```python
import torch

def _softmax(x, axis=-1):
    return torch.softmax(x, dim=axis)
def _gelu(x):
    return torch.nn.functional.gelu(x, approximate="tanh")
def _silu(x):
    return torch.nn.functional.silu(x)
def _sigmoid(x):
    return torch.sigmoid(x)
def _layernorm(x, axis=-1, eps=1e-5):
    m = x.mean(dim=axis, keepdim=True)
    v = x.var(dim=axis, keepdim=True, unbiased=False)
    return (x - m) / torch.sqrt(v + eps)
def _scatter_add(tgt, idx, src, axis=0):
    return tgt.clone().index_add_(axis, idx, src)
def _segment_sum(src, seg, n):
    out = torch.zeros((n,) + src.shape[1:], dtype=src.dtype)
    return out.index_add_(0, seg, src)
def _pad(x, pw):
    flat = tuple(v for pair in reversed(pw) for v in pair)
    return torch.nn.functional.pad(x, flat)

kernel_name = 'parallel_sum__spectral_gfnet__dense_activation_gelu__prompt'

def setup_inputs():

    _w = (lambda a: (lambda t: t.to(torch.bfloat16) if t.is_floating_point() else t)(torch.as_tensor(a)))
    def _A_setup():
        B, S, D = 1, 2048, 640
        Df = D // 2 + 1
        return {
            "x": _w((lambda *s: torch.randn(*s, dtype=torch.bfloat16) * 0.05)(B, S, D)),
            "w_r": _w((lambda *s: torch.randn(*s, dtype=torch.bfloat16) * 0.8)(S, Df) * 0.02),
            "w_i": _w((lambda *s: torch.randn(*s, dtype=torch.bfloat16) * 0.8)(S, Df) * 0.02),
        }
    _A_in = _A_setup()

    def _B_setup():
        B, S, D, F = 1, 2048, 640, 1728
        return {
            "x": _w((lambda *s: torch.randn(*s, dtype=torch.bfloat16) * 0.05)(B, S, D)),
            "w1": _w((lambda *s: torch.randn(*s, dtype=torch.bfloat16) * 0.4)(D, F) * (D ** -0.5)),
            "b1": _w((lambda *s: torch.randn(*s, dtype=torch.bfloat16) * 12.8)(F) * 0.01),
            "w2": _w((lambda *s: torch.randn(*s, dtype=torch.bfloat16) * 0.2)(F, D) * (F ** -0.5)),
            "b2": _w((lambda *s: torch.randn(*s, dtype=torch.bfloat16) * 1.6)(D) * 0.01),
        }
    _B_in = _B_setup()

    return {
        "A_x": _A_in["x"],
        "A_w_r": _A_in["w_r"],
        "A_w_i": _A_in["w_i"],
        "B_x": _B_in["x"],
        "B_w1": _B_in["w1"],
        "B_b1": _B_in["b1"],
        "B_w2": _B_in["w2"],
        "B_b2": _B_in["b2"],
    }

def reference(A_x, A_w_r, A_w_i, B_x, B_w1, B_b1, B_w2, B_b2):
    def _A_ref(x, w_r, w_i):
        B, S, D = x.shape
        X = (lambda x, axes=(-2,-1): torch.fft.rfft2(x.float(), dim=axes))(x, axes=(-2, -1))
        W = w_r + 1j * w_i
        X = X * W
        y = (lambda x, s, axes=(-2,-1): torch.fft.irfft2(x, s=s, dim=axes).to(torch.bfloat16))(X, (S, D), axes=(-2, -1))
        return y

    def _B_ref(x, w1, b1, w2, b2):
        h = torch.einsum("bsd,df->bsf", x, w1) + b1
        h = _gelu(h)
        return torch.einsum("bsf,fd->bsd", h, w2) + b2

    x = A_x
    xn = _layernorm(x, axis=-1)
    return x + _A_ref(xn, A_w_r, A_w_i) + _B_ref(xn, B_w1, B_b1, B_w2, B_b2)
```

```python
import struct
NAME = "parallel_sum__spectral_gfnet__dense_activation_gelu__prompt"
def fhex(x): return "0x%08x" % struct.unpack("<I", struct.pack("<f", x))[0]
class Reg:
    def __init__(self, kind, base, n): self.kind, self.base, self.n = kind, base, n
    def __str__(self): return f"{self.kind}{self.base}" if self.n == 1 else f"{self.kind}[{self.base}:{self.base+self.n-1}]"
    __repr__ = __str__
    def __format__(self, spec): return str(self)
    def __getitem__(self, i):
        if isinstance(i, slice):
            st = i.start or 0; en = self.n if i.stop is None else i.stop
            assert 0 <= st < en <= self.n, (st, en, self.n)
            return Reg(self.kind, self.base + st, en - st)
        assert 0 <= i < self.n, (i, self.n)
        return Reg(self.kind, self.base + i, 1)
class Alloc:
    def __init__(self, kind, start, limit): self.kind, self.p, self.limit, self.hi = kind, start, limit, start
    def __call__(self, n=1, align=None):
        if align is None: align = 1 if n == 1 else (2 if (n == 2 or self.kind != 's') else 4)
        self.p = (self.p + align - 1) // align * align
        r = Reg(self.kind, self.p, n); self.p += n; self.hi = max(self.hi, self.p)
        assert self.p <= self.limit, f"out of {self.kind} regs"
        return r
    def mark(self): return self.p
    def release(self, m): self.p = m
class Asm:
    def __init__(self, prefix="L"): self.lines = []; self.n = 0; self.prefix = prefix
    def __call__(self, s):
        for l in s.strip("\n").split("\n"):
            l = l.strip()
            if not l: continue
            self.lines.append(l if l.endswith(":") else "    " + l)
    def label(self, p=""):
        self.n += 1; return f"{self.prefix}_{p}{self.n}"
    def text(self): return "\n".join(self.lines) + "\n"
    def srd(self, r, lo, hi, nbytes):
        self(f"s_mov_b32 {r[0]}, {lo}\ns_mov_b32 {r[1]}, {hi}\ns_mov_b32 {r[2]}, {nbytes}\ns_mov_b32 {r[3]}, 0x20000")
    def srd_off(self, r, ptr, off, nbytes):
        self(f"s_add_u32 {r[0]}, {ptr[0]}, {off}\ns_addc_u32 {r[1]}, {ptr[1]}, 0\ns_mov_b32 {r[2]}, {nbytes}\ns_mov_b32 {r[3]}, 0x20000")
def kernel_head(name):
    return f".globl {name}\n.p2align 8\n.type {name},@function\n{name}:\n"
def kernel_desc(name, vgpr, sgpr=102, accum=None):
    if accum is None: accum = min(256, (vgpr + 3) // 4 * 4)
    return f""".amdhsa_kernel {name}
  .amdhsa_next_free_vgpr {vgpr}
  .amdhsa_next_free_sgpr {sgpr}
  .amdhsa_accum_offset {accum}
  .amdhsa_group_segment_fixed_size 0
  .amdhsa_kernarg_size 88
  .amdhsa_user_sgpr_count 2
  .amdhsa_user_sgpr_kernarg_segment_ptr 1
  .amdhsa_system_sgpr_workgroup_id_x 1
.end_amdhsa_kernel
"""
def module(kernels, launches, extra_text="", head=""):
    s = head
    for (n, g, b, l) in launches:
        s += f"; @launch kernel={n} grid=({g},1,1) block=({b},1,1) lds={l}\n"
    s += '.amdgcn_target "amdgcn-amd-amdhsa--gfx950"\n.text\n'
    for (n, body, v, a) in kernels: s += kernel_head(n) + body
    s += extra_text
    s += '.section .rodata,"a"\n'
    for (n, body, v, a) in kernels: s += ".p2align 6\n" + kernel_desc(n, v, 102, a)
    return s

STAMP_WS = 0x4000000
class Stamps:
    def __init__(self, a, kid, on): self.a, self.kid, self.on = a, kid, on
    def __call__(self, k):
        if not self.on: return
        if k == 0: self.a("s_memrealtime s[78:79]")
        self.a(f"{'s_memrealtime' if self.on == 'rt' else 's_memtime'} s[{80+2*k}:{81+2*k}]\ns_waitcnt lgkmcnt(0)")
    def init(self):
        if not self.on: return
        for k in range(1, 9): self.a(f"s_mov_b32 s{80+2*k}, 0")
    def flush(self, pWS, sW, wait_stores=True):
        if not self.on: return
        a = self.a
        if wait_stores: a("s_waitcnt vmcnt(0)")
        a(f"{'s_memrealtime' if self.on == 'rt' else 's_memtime'} s[96:97]\ns_memrealtime s[98:99]\ns_waitcnt lgkmcnt(0)")
        a(f"s_add_u32 s72, {pWS[0]}, {STAMP_WS + self.kid * 512 * 8 * 64}\ns_addc_u32 s73, {pWS[1]}, 0\ns_mov_b32 s74, {512*8*64}\ns_mov_b32 s75, 0x20000")
        a(f"s_lshl_b32 s76, s2, 3\ns_add_u32 s76, s76, {sW}\ns_lshl_b32 s76, s76, 6\nv_mov_b32 v0, 0")
        a("s_mov_b64 exec, 1")
        a("v_mov_b32 v2, s78\nv_mov_b32 v3, s98\nbuffer_store_dwordx2 v[2:3], v0, s[72:75], s76 offen")
        for k in range(1, 9):
            a(f"s_sub_u32 s77, s{80+2*k}, s80\ns_cmp_eq_u32 s{80+2*k}, 0\ns_cselect_b32 s77, 0, s77\nv_mov_b32 v{3+k}, s77\nbuffer_store_dword v{3+k}, v0, s[72:75], s76 offen offset:{4+4*k}")
        a("s_mov_b64 exec, -1")
```

```python
from asmlib import *
import math
WS_H, WS_V, WS_P, WS_Z = 0, 0x800000, 0xB00000, 0x1000000
H_BYTES, V_BYTES, P_BYTES, Z_BYTES = 64*108*1024, 32*64*320*4, 64*21*16*128, 3*64*20*2*1024
X_BYTES, W1_BYTES, W_BYTES = 2048*1280, 640*3456, 2048*642
P1_LDS = 140288
RS_OFF, CS_OFF, RSTD_OFF = 131072, 135168, 139264
MF32 = "v_mfma_f32_32x32x16_bf16"
MF4 = "v_mfma_f32_4x4x4_16b_bf16"

def row_stats_finish(a, V, s1, s2, tmp, mb, den, rstd):
    a(f"""
    v_mul_f32 {s1}, {fhex(1/640)}, {s1}
    v_mul_f32 {s2}, {fhex(1/640)}, {s2}
    v_fma_f32 {s2}, -{s1}, {s1}, {s2}
    v_max_f32 {s2}, 0, {s2}
    v_cvt_pk_bf16_f32 {tmp}, {s1}, {s2}
    v_lshlrev_b32 {mb}, 16, {tmp}
    v_and_b32 {s2}, 0xffff0000, {tmp}
    v_add_f32 {s2}, {fhex(1e-5)}, {s2}
    v_cvt_pk_bf16_f32 {tmp}, {s2}, {s2}
    v_and_b32 {s2}, 0xffff0000, {tmp}
    v_sqrt_f32 {s2}, {s2}
    s_nop 0
    v_cvt_pk_bf16_f32 {tmp}, {s2}, {s2}
    v_and_b32 {den}, 0xffff0000, {tmp}
    v_rcp_f32 {rstd}, {den}
    s_nop 0
    """)

def gen_p1(stamp=False):
    a = Asm("P1")
    ST = Stamps(a, 0, stamp)
    S = Alloc('s', 3, 72); V = Alloc('v', 1, 256)
    pX = S(2); pW1 = S(2); pB1 = S(2); pWS = S(2)
    rX = S(4); rW1 = S(4); rB1 = S(4); rOut = S(4)
    sW, sQ, sHf, sRb, sUnit, sIsDft, sRot, sC, sSlot, sT0, sT1, sT2, sCk, sSoA, sSoB, sPSlot, sXq = [S() for _ in range(17)]
    sMask = S(2)
    vL = V(); vN1 = V(); vH = V(); vT0 = V(); vT1 = V(); vT2 = V()
    vOffA = V(2); vXb = V(); vXa = V(4)
    vS1 = V(4); vS2 = V(4); vOnes = V(2)
    Lend = "P1_end"
    a(f"""
    s_cmp_ge_u32 s2, 256
    s_cbranch_scc1 {Lend}
    """)
    ST(0); ST.init()
    a(f"""
    s_load_dwordx2 {pX}, s[0:1], 0
    s_load_dwordx2 {pW1}, s[0:1], 32
    s_load_dwordx2 {pB1}, s[0:1], 40
    s_load_dwordx2 {pWS}, s[0:1], 80
    v_lshrrev_b32 {vT0}, 6, v0
    v_and_b32 {vL}, 63, v0
    v_readfirstlane_b32 {sW}, {vT0}
    v_and_b32 {vN1}, 31, v0
    v_lshrrev_b32 {vH}, 5, {vL}
    s_and_b32 {sT0}, s2, 7            ; xcd
    s_lshr_b32 {sT1}, s2, 3           ; idx
    s_mul_i32 {sT2}, {sT1}, 52
    s_lshr_b32 {sT2}, {sT2}, 8        ; j = idx/5
    s_mul_i32 {sC}, {sT2}, 5
    s_sub_u32 {sC}, {sT1}, {sC}       ; i = idx%5
    s_add_u32 {sRot}, {sC}, {sT2}
    s_lshl_b32 {sRot}, {sRot}, 1
    s_cmp_ge_u32 {sT2}, 5
    s_addc_u32 {sRot}, {sRot}, 0      ; rot = 2(i+j) + (j>=5)
    s_cmp_ge_u32 {sRot}, 10
    s_cselect_b32 {sCk}, 10, 0
    s_sub_u32 {sRot}, {sRot}, {sCk}
    s_and_b32 {sQ}, {sW}, 3
    s_lshr_b32 {sHf}, {sW}, 2
    s_mul_i32 {sT0}, {sT0}, 6
    s_cmp_ge_u32 {sT1}, 30
    s_cbranch_scc1 P1_dd
    s_add_u32 {sT0}, {sT0}, {sT2}     ; pi
    s_and_b32 {sRb}, {sT0}, 15
    s_lshr_b32 {sT0}, {sT0}, 4        ; tau
    s_lshl_b32 {sC}, {sC}, 1
    s_add_u32 {sC}, {sC}, {sHf}       ; v = 2i+hf
    s_mul_i32 {sUnit}, {sT0}, 9
    s_add_u32 {sUnit}, {sUnit}, {sC}
    s_cmp_eq_u32 {sC}, 9
    s_cselect_b32 {sUnit}, {sT0}, {sUnit}
    s_cselect_b32 {sIsDft}, 1, 0
    s_branch P1_dec
    P1_dd:
    s_add_u32 {sT0}, {sT0}, {sC}      ; 6c + (idx-30)
    s_and_b32 {sRb}, {sT0}, 15
    s_add_u32 {sUnit}, {sHf}, 3
    s_mov_b32 {sIsDft}, 1
    P1_dec:
    s_lshl_b32 {sT0}, {sHf}, 1
    s_xor_b32 {sXq}, {sQ}, {sT0}      ; X = q ^ (hf<<1)
    v_lshrrev_b32 {vT0}, 3, {vL}
    s_and_b32 {sT0}, {sW}, 1
    s_lshl_b32 {sT0}, {sT0}, 4
    v_add_u32 {vT0}, {sT0}, {vT0}
    s_mov_b32 {sT1}, {64*1280}
    v_mul_lo_u32 {vT0}, {vT0}, {sT1}
    v_lshrrev_b32 {vT1}, 4, {vL}
    v_and_b32 {vT2}, 7, {vL}
    v_xor_b32 {vT1}, {vT1}, {vT2}
    v_lshl_add_u32 {vOffA[0]}, {vT1}, 4, {vT0}
    v_xor_b32 {vOffA[1]}, 64, {vOffA[0]}
    v_add_u32 {vOffA[1]}, {8*64*1280 - 1024}, {vOffA[1]}
    s_lshl_b32 {sT0}, {sRb}, 2
    s_lshr_b32 {sT1}, {sW}, 1
    s_add_u32 {sT0}, {sT0}, {sT1}
    s_mul_i32 {sSoA}, {sT0}, 1280
    v_lshrrev_b32 {vT0}, 1, {vN1}
    v_and_b32 {vT0}, 7, {vT0}
    v_xor_b32 {vT0}, {vT0}, {vH}
    v_lshlrev_b32 {vT0}, 4, {vT0}
    v_lshl_add_u32 {vXb}, {vN1}, 7, {vT0}
    s_lshl_b32 {sT0}, {sQ}, 12
    v_add_u32 {vXb}, {sT0}, {vXb}
    v_mov_b32 {vOnes[0]}, 0x3f803f80
    v_mov_b32 {vOnes[1]}, 0x3f803f80
    """)
    for i in range(4): a(f"v_mov_b32 {vS1[i]}, 0\nv_mov_b32 {vS2[i]}, 0")
    a("s_waitcnt lgkmcnt(0)")
    ST(1)
    a.srd(rX, pX[0], pX[1], X_BYTES)
    a(f"""
    s_cmp_eq_u32 {sIsDft}, 1
    s_cbranch_scc1 P1_dft
    """)
    def next_chunk():
        a(f"""
        s_add_u32 {sCk}, {sCk}, 1
        s_cmp_eq_u32 {sCk}, 10
        s_cselect_b32 {sCk}, 0, {sCk}
        s_add_u32 {sPSlot}, {sPSlot}, 0x8000
        s_and_b32 {sPSlot}, {sPSlot}, 0x1ffff
        """)
    def dma_a(oob):
        a(f"""
        s_lshl_b32 {sT0}, {sCk}, 7
        s_add_u32 {sT0}, {sT0}, {sSoA}
        s_lshl_b32 {sT1}, {sW}, 11
        s_add_u32 m0, {sT1}, {sPSlot}
        """)
        if oob: a(f"s_cmp_ge_u32 {sC}, 7\ns_cselect_b32 {rX[2]}, 0, {rX[2]}")
        else: a("s_nop 0")
        a(f"""
        buffer_load_dwordx4 {vOffA[0]}, {rX}, {sT0} offen lds
        buffer_load_dwordx4 {vOffA[1]}, {rX}, {sT0} offen offset:1024 lds
        """)
    def stats_mfma(x):
        return [f"{MF4} {vS2}, {x[0:2]}, {x[0:2]}, {vS2}", f"{MF4} {vS1}, {vOnes}, {x[0:2]}, {vS1}",
                "s_nop 0",
                f"{MF4} {vS2}, {x[2:4]}, {x[2:4]}, {vS2}", f"{MF4} {vS1}, {vOnes}, {x[2:4]}, {vS1}"]
    def stats_publish():
        a(f"""
        v_and_b32 {vT0}, 3, {vL}
        v_cmp_eq_u32 vcc, 1, {vT0}
        s_lshl_b32 {sT0}, {sW}, 9
        s_add_u32 {sT0}, {sT0}, {RS_OFF}
        v_cndmask_b32 {vS2[0]}, {vS2[0]}, {vS2[1]}, vcc
        v_cmp_eq_u32 vcc, 2, {vT0}
        v_lshl_add_u32 {vT1}, {vL}, 3, {sT0}
        s_nop 0
        v_cndmask_b32 {vS2[0]}, {vS2[0]}, {vS2[2]}, vcc
        v_cmp_eq_u32 vcc, 3, {vT0}
        s_nop 1
        v_cndmask_b32 {vS1[1]}, {vS2[0]}, {vS2[3]}, vcc
        ds_write_b64 {vT1}, {vS1[0:2]}
        """)
    def stats_read(dst):
        a(f"""
        s_lshl_b32 {sT0}, {sQ}, 9
        s_add_u32 {sT0}, {sT0}, {RS_OFF}
        v_lshl_add_u32 {vT0}, {vN1}, 3, {sT0}
        v_add_u32 {vT2}, 2048, {vT0}
        ds_read2_b64 {dst[0:4]}, {vT0} offset0:0 offset1:32
        ds_read2_b64 {dst[4:8]}, {vT2} offset0:0 offset1:32
        """)
    def stats_sum(dst):
        a(f"""
        v_pk_add_f32 {dst[0:2]}, {dst[0:2]}, {dst[2:4]}
        v_pk_add_f32 {dst[4:6]}, {dst[4:6]}, {dst[6:8]}
        v_pk_add_f32 {dst[0:2]}, {dst[0:2]}, {dst[4:6]}
        """)
    mark = V.mark()
    vOffB = V(); vWb = V(); vWa = V(2); vB1 = V(2)
    acc = [V(16), V(16)]
    bufX = [V(4), V(4)]; bufW = [[V(4), V(4)], [V(4), V(4)]]
    vCs = [V(4), V(4)]
    a.srd(rW1, pW1[0], pW1[1], W1_BYTES)
    a.srd(rB1, pB1[0], pB1[1], 1728*2)
    a.srd_off(rOut, pWS, WS_H, H_BYTES)
    a(f"""
    ; b1
    s_lshl_b32 {sT0}, {sUnit}, 7
    v_lshlrev_b32 {vT0}, 1, {vN1}
    buffer_load_ushort {vB1[0]}, {vT0}, {rB1}, {sT0} offen
    buffer_load_ushort {vB1[1]}, {vT0}, {rB1}, {sT0} offen offset:64
    v_lshrrev_b32 {vT0}, 3, {vL}
    s_movk_i32 {sT1}, 3456
    v_mul_lo_u32 {vT0}, {vT0}, {sT1}
    v_lshrrev_b32 {vT1}, 2, {vL}
    v_and_b32 {vT1}, 4, {vT1}
    v_and_b32 {vT2}, 7, {vL}
    v_xor_b32 {vT1}, {vT1}, {vT2}
    v_lshl_add_u32 {vOffB}, {vT1}, 4, {vT0}
    s_mul_i32 {sSoB}, {sQ}, {16*3456}
    s_add_u32 {sSoB}, {sSoB}, {sT0}
    s_mov_b32 {sCk}, {sRot}
    s_mov_b32 {sPSlot}, 0
    """)
    def dma_b(oob):
        a(f"""
        s_mul_i32 {sT0}, {sCk}, {64*3456}
        s_add_u32 {sT0}, {sT0}, {sSoB}
        s_add_u32 m0, m0, 16384
        """)
        if oob: a(f"s_cmp_ge_u32 {sC}, 7\ns_cselect_b32 {rW1[2]}, 0, {rW1[2]}")
        a(f"""
        s_add_u32 {sT1}, {sT0}, {8*3456 - 1024}
        buffer_load_dwordx4 {vOffB}, {rW1}, {sT0} offen lds
        buffer_load_dwordx4 {vOffB}, {rW1}, {sT1} offen offset:1024 lds
        """)
    for c in range(3):
        dma_a(False); dma_b(False); next_chunk()
    a(f"""
    v_and_b32 {vT0}, 15, {vL}          ; i
    v_lshrrev_b32 {vT1}, 2, {vT0}      ; i/4
    v_lshl_add_u32 {vT1}, {vH}, 3, {vT1}
    v_lshlrev_b32 {vWb}, 7, {vT1}
    v_and_b32 {vT1}, 8, {vT0}
    v_lshl_add_u32 {vWb}, {vT1}, 3, {vWb}
    v_and_b32 {vT1}, 16, {vL}
    v_lshl_add_u32 {vWb}, {vT1}, 1, {vWb}
    v_and_b32 {vT1}, 3, {vL}
    v_lshl_add_u32 {vWb}, {vT1}, 3, {vWb}
    s_lshl_b32 {sT0}, {sHf}, 13
    s_lshl_b32 {sT1}, {sXq}, 11
    s_add_u32 {sT0}, {sT0}, {sT1}
    s_add_u32 {sT0}, {sT0}, 16384
    v_add_u32 {vWb}, {sT0}, {vWb}
    s_lshl_b32 {sT1}, {sXq}, 5
    v_xor_b32 {vXb}, {sT1}, {vXb}
    """)
    for r in acc + [bufX[1], bufW[1][0], bufW[1][1]] + vCs:
        for i in range(r.n): a(f"v_mov_b32 {r[i]}, 0")
    vXs = V(); vWs = V()
    ST(2)
    if stamp: a("s_waitcnt vmcnt(8)"); ST(3)
    a(f"""
    s_mov_b32 {sC}, 0
    s_mov_b32 {sSlot}, 0
    P1_mloop:
    s_waitcnt vmcnt(8)
    s_barrier
    v_add_u32 {vXs}, {sSlot}, {vXb}
    v_add_u32 {vWs}, {sSlot}, {vWb}
    """)
    def mreads(ks, b):
        if ks == 0:
            xa, w0 = vXs, vWs
        else:
            xa, w0 = vXa[0], vWa[0]
            a(f"v_xor_b32 {xa}, {ks<<5}, {vXs}\nv_xor_b32 {w0}, {ks<<11}, {vWs}")
        a(f"""
        v_xor_b32 {vWa[1]}, 64, {w0}
        ds_read_b128 {bufX[b]}, {xa}
        ds_read_b64_tr_b16 {bufW[b][0][0:2]}, {w0}
        ds_read_b64_tr_b16 {bufW[b][0][2:4]}, {w0} offset:512
        ds_read_b64_tr_b16 {bufW[b][1][0:2]}, {vWa[1]}
        ds_read_b64_tr_b16 {bufW[b][1][2:4]}, {vWa[1]} offset:512
        """)
    def mmfma(ks, b):
        a(f"{MF32} {acc[0]}, {bufW[b][0]}, {bufX[b]}, {acc[0]}")
        if ks in (0, 1):
            for l in stats_mfma(bufX[b]): a(l)
        a(f"{MF32} {acc[1]}, {bufW[b][1]}, {bufX[b]}, {acc[1]}")
        if ks == 0:
            a(f"""
            {MF4} {vCs[0]}, {vOnes}, {bufW[b][0][0:2]}, {vCs[0]}
            {MF4} {vCs[1]}, {vOnes}, {bufW[b][1][0:2]}, {vCs[1]}
            s_nop 0
            {MF4} {vCs[0]}, {vOnes}, {bufW[b][0][2:4]}, {vCs[0]}
            {MF4} {vCs[1]}, {vOnes}, {bufW[b][1][2:4]}, {vCs[1]}
            """)
    mreads(0, 0); mmfma(3, 1)
    dma_a(True); dma_b(True); next_chunk()
    for ks in range(1, 4):
        a("s_waitcnt lgkmcnt(0)")
        mreads(ks, ks % 2); mmfma(ks - 1, (ks - 1) % 2)
    a(f"""
    s_add_u32 {sSlot}, {sSlot}, 0x8000
    s_and_b32 {sSlot}, {sSlot}, 0x1ffff
    s_add_u32 {sC}, {sC}, 1
    s_cmp_lt_u32 {sC}, 10
    s_waitcnt lgkmcnt(0)
    s_cbranch_scc1 P1_mloop
    """)
    ST(4)
    mmfma(3, 1)
    stats_publish()
    a(f"""
    v_mov_b32 {vCs[0][1]}, {vCs[1][0]}
    ds_write_b64 {vT1}, {vCs[0][0:2]} offset:{CS_OFF - RS_OFF}
    s_waitcnt lgkmcnt(0)
    s_barrier
    """)
    st = V(8); cs = V(16); vMb = V(); vDen = V(); vRstd = V(2); augX = V(4); augW = [V(4), V(4)]
    stats_read(st)
    a(f"""
    s_lshl_b32 {sT0}, {sHf}, 11
    s_add_u32 {sT0}, {sT0}, {CS_OFF}
    v_lshl_add_u32 {vT0}, {vN1}, 3, {sT0}
    """)
    for i in range(4): a(f"ds_read2_b64 {cs[4*i:4*i+4]}, {vT0} offset0:{64*i} offset1:{64*i+32}")
    a("s_waitcnt lgkmcnt(4)")
    stats_sum(st)
    row_stats_finish(a, V, st[0], st[1], vT0, vMb, vDen, vRstd[0])
    a(f"""
    v_cmp_eq_u32 vcc, 0, {vH}
    v_lshrrev_b32 {vT0}, 16, {vMb}
    v_or_b32 {vT0}, {vT0}, {vMb}
    v_lshrrev_b32 {vT1}, 16, {vDen}           ; (den, 0)
    v_cndmask_b32 {augX[0]}, 0, {vT0}, vcc
    v_cndmask_b32 {augX[1]}, 0, {vT1}, vcc
    v_mov_b32 {augX[2]}, 0
    v_mov_b32 {augX[3]}, 0
    s_waitcnt lgkmcnt(0)
    """)
    for (d, s) in ((0, 2), (4, 6), (8, 10), (12, 14), (0, 4), (8, 12), (0, 8)):
        a(f"v_pk_add_f32 {cs[d:d+2]}, {cs[d:d+2]}, {cs[s:s+2]}")
    a("s_waitcnt vmcnt(12)")
    for t in range(2):
        a(f"""
        v_cvt_pk_bf16_f32 {vT0}, -{cs[t]}, -{cs[t]}
        v_and_b32 {vT1}, 0xffff0000, {vT0}
        v_sub_f32 {vT1}, -{cs[t]}, {vT1}
        v_cvt_pk_bf16_f32 {augW[t][0]}, -{cs[t]}, {vT1}
        v_mov_b32 {augW[t][1]}, {vB1[t]}
        v_mov_b32 {augW[t][2]}, 0
        v_mov_b32 {augW[t][3]}, 0
        """)
    c0 = -2 * math.sqrt(2 / math.pi) * math.log2(math.e); c1 = c0 * 0.044715
    vC0 = V(2); vC1 = V(2); vOne = V(2); g = [V(2) for _ in range(4)]; vOffH = V()
    a(f"""
    s_nop 1
    {MF32} {acc[0]}, {augW[0]}, {augX}, {acc[0]}
    {MF32} {acc[1]}, {augW[1]}, {augX}, {acc[1]}
    v_mov_b32 {vC0[0]}, {fhex(c0)}
    v_mov_b32 {vC0[1]}, {fhex(c0)}
    v_mov_b32 {vC1[0]}, {fhex(c1)}
    v_mov_b32 {vC1[1]}, {fhex(c1)}
    v_mov_b32 {vOne[0]}, 1.0
    v_mov_b32 {vOne[1]}, 1.0
    v_mov_b32 {vRstd[1]}, {vRstd[0]}
    v_lshlrev_b32 {vOffH}, 4, {vL}
    s_lshl_b32 {sT0}, {sRb}, 2
    s_add_u32 {sT0}, {sT0}, {sQ}
    s_mul_i32 {sT0}, {sT0}, 108
    s_lshl_b32 {sT1}, {sUnit}, 2
    s_add_u32 {sT0}, {sT0}, {sT1}
    s_lshl_b32 {sT0}, {sT0}, 10
    s_nop 1
    """)
    ST(5)
    for t in range(2):
        for e in range(2):
            P = [acc[t][8*e+2*i:8*e+2*i+2] for i in range(4)]
            for i in range(4): a(f"v_pk_mul_f32 {P[i]}, {P[i]}, {vRstd}")
            for i in range(4): a(f"v_pk_mul_f32 {g[i]}, {P[i]}, {P[i]}")
            for i in range(4): a(f"v_pk_fma_f32 {g[i]}, {g[i]}, {vC1}, {vC0}")
            for i in range(4): a(f"v_pk_mul_f32 {g[i]}, {g[i]}, {P[i]}")
            for i in range(4): a(f"v_exp_f32 {g[i][0]}, {g[i][0]}\nv_exp_f32 {g[i][1]}, {g[i][1]}")
            for i in range(4): a(f"v_pk_add_f32 {g[i]}, {g[i]}, {vOne}")
            for i in range(4): a(f"v_rcp_f32 {g[i][0]}, {g[i][0]}\nv_rcp_f32 {g[i][1]}, {g[i][1]}")
            for i in range(4): a(f"v_pk_mul_f32 {g[i]}, {g[i]}, {P[i]}")
            o = acc[t][8*e:8*e+4]
            for i in range(4): a(f"v_cvt_pk_bf16_f32 {o[i]}, {g[i][0]}, {g[i][1]}")
            a(f"buffer_store_dwordx4 {o}, {vOffH}, {rOut}, {sT0} offen offset:{(2*t+e)*1024}")
    ST(6); ST.flush(pWS, sW)
    a("s_endpgm")
    hi_m = V.hi
    V.release(mark)
    a("P1_dft:")
    acc = [V(16) for _ in range(4)]
    bufX = [V(8), V(8)]; bufF = [V(16), V(16)]; pE = V(4); pO = V(4)
    vFb = V(); vFw = V(); vStepC = V(); vStepS = V(); vPhS = V(); vD0 = V(); vBc = V(); vBs = V()
    vSelE = V(); vSelO = V(); gen = V(16); vXs = V(); vFs = V(); vFa = V()
    a.srd_off(rOut, pWS, WS_V, V_BYTES)
    a(f"""
    s_mov_b32 {sCk}, {sRot}
    s_mov_b32 {sPSlot}, 0
    """)
    for c in range(3):
        dma_a(False); next_chunk()
    a(f"""
    v_mov_b32 {vSelE}, 0x05040100
    v_mov_b32 {vSelO}, 0x07060302
    ; k = 32 t + n1
    s_lshl_b32 {sT0}, {sUnit}, 5
    v_add_u32 {vT0}, {sT0}, {vN1}
    v_cmp_eq_u32 {sMask}, 0, {vT0}
    v_cvt_f32_u32 {vStepC}, {vT0}
    v_mul_f32 {vStepC}, {fhex(1/640)}, {vStepC}
    v_mov_b32 {vT1}, {fhex(0.25)}
    v_cndmask_b32 {vStepS}, {vStepC}, {vT1}, {sMask}
    s_and_b32 {sT1}, {sQ}, 1                   ; parity p
    s_cmp_eq_u32 {sT1}, 0
    s_cselect_b32 {sT2}, {fhex(0.25)}, 0
    v_mov_b32 {vT1}, {sT2}
    v_cndmask_b32 {vPhS}, 0, {vT1}, {sMask}
    ; d0 = 32u + 8h + p
    s_lshr_b32 {sT2}, {sQ}, 1
    s_lshl_b32 {sT2}, {sT2}, 5
    s_add_u32 {sT2}, {sT2}, {sT1}
    v_lshl_add_u32 {vD0}, {vH}, 3, {sT2}
    s_lshl_b32 {sT0}, {sW}, 11
    s_add_u32 {sT0}, {sT0}, 16384
    v_lshl_add_u32 {vFw}, {vL}, 4, {sT0}
    s_lshl_b32 {sT0}, {sHf}, 13
    s_lshr_b32 {sT1}, {sXq}, 1
    s_lshl_b32 {sT2}, {sT1}, 12
    s_add_u32 {sT0}, {sT0}, {sT2}
    s_add_u32 {sT0}, {sT0}, 16384
    v_lshl_add_u32 {vFb}, {vL}, 4, {sT0}
    s_lshl_b32 {sT1}, {sT1}, 6
    v_xor_b32 {vXb}, {sT1}, {vXb}
    s_mov_b32 {sCk}, {sRot}
    s_mov_b32 {sPSlot}, 0
    """)
    offs = [0, 2, 4, 6, 16, 18, 20, 22]
    def gen_f():
        L = [f"s_lshl_b32 {sT0}, {sCk}, 6", f"v_add_u32 {vT0}, {sT0}, {vD0}", f"v_cvt_f32_u32 {vT0}, {vT0}",
             f"v_mul_f32 {vBc}, {vT0}, {vStepC}", f"v_fma_f32 {vBs}, {vT0}, {vStepS}, {vPhS}",
             f"v_add_u32 {vFa}, {sPSlot}, {vFw}"]
        for j, o in enumerate(offs):
            if o == 0: L += [f"v_cos_f32 {gen[0]}, {vBc}", f"v_sin_f32 {gen[8]}, {vBs}"]
            else:
                L += [f"v_fmamk_f32 {gen[j]}, {vStepC}, {fhex(o)}, {vBc}", f"v_fmamk_f32 {gen[8+j]}, {vStepS}, {fhex(o)}, {vBs}",
                      f"v_cos_f32 {gen[j]}, {gen[j]}", f"v_sin_f32 {gen[8+j]}, {gen[8+j]}"]
        L += ["s_nop 0"]
        for j in range(4): L += [f"v_cvt_pk_bf16_f32 {gen[j]}, {gen[2*j]}, {gen[2*j+1]}"]
        for j in range(4): L += [f"v_cvt_pk_bf16_f32 {gen[4+j]}, {gen[8+2*j]}, {gen[8+2*j+1]}"]
        L += [f"ds_write_b128 {vFa}, {gen[0:4]}", f"ds_write_b128 {vFa}, {gen[4:8]} offset:1024"]
        return L
    a(f"s_mov_b32 {sC}, 0\nP1_dpro:")
    for l in gen_f(): a(l)
    next_chunk()
    a(f"""
    s_add_u32 {sC}, {sC}, 1
    s_cmp_lt_u32 {sC}, 3
    s_cbranch_scc1 P1_dpro
    """)
    for r in acc + [bufX[1], bufF[1]]:
        for i in range(r.n): a(f"v_mov_b32 {r[i]}, 0")
    ST(2)
    if stamp: a("s_waitcnt vmcnt(4)"); ST(3)
    a(f"""
    s_mov_b32 {sC}, 0
    s_mov_b32 {sSlot}, 0
    s_waitcnt lgkmcnt(0)
    P1_dloop:
    s_waitcnt vmcnt(4)
    s_barrier
    v_add_u32 {vXs}, {sSlot}, {vXb}
    v_add_u32 {vFs}, {sSlot}, {vFb}
    """)
    def dreads(u, b):
        if u == 1: a(f"v_xor_b32 {vXs}, 64, {vXs}\nv_xor_b32 {vFs}, 4096, {vFs}")
        a(f"""
        v_xor_b32 {vXa[0]}, 32, {vXs}
        ds_read_b128 {bufX[b][0:4]}, {vXs}
        ds_read_b128 {bufX[b][4:8]}, {vXa[0]}
        """)
        for i in range(4): a(f"ds_read_b128 {bufF[b][4*i:4*i+4]}, {vFs} offset:{1024*i}")
    def dmfma(u, b):
        for i in range(4): a(f"v_perm_b32 {pE[i]}, {bufX[b][2*i+1]}, {bufX[b][2*i]}, {vSelE}")
        for i in range(4): a(f"v_perm_b32 {pO[i]}, {bufX[b][2*i+1]}, {bufX[b][2*i]}, {vSelO}")
        a(f"{MF32} {acc[0]}, {pE}, {bufF[b][0:4]}, {acc[0]}")
        if u == 0:
            for l in stats_mfma(bufX[b][0:4]): a(l)
        a(f"{MF32} {acc[1]}, {pE}, {bufF[b][4:8]}, {acc[1]}")
        if u == 0:
            for l in stats_mfma(bufX[b][4:8]): a(l)
        a(f"{MF32} {acc[2]}, {pO}, {bufF[b][8:12]}, {acc[2]}")
        a(f"{MF32} {acc[3]}, {pO}, {bufF[b][12:16]}, {acc[3]}")
    dreads(0, 0); dmfma(1, 1)
    dma_a(True)
    a("s_waitcnt lgkmcnt(0)")
    dreads(1, 1); dmfma(0, 0)
    a(f"s_cmp_ge_u32 {sC}, 7\ns_cbranch_scc1 P1_dskip")
    for l in gen_f(): a(l)
    a("P1_dskip:")
    next_chunk()
    a(f"""
    s_add_u32 {sSlot}, {sSlot}, 0x8000
    s_and_b32 {sSlot}, {sSlot}, 0x1ffff
    s_add_u32 {sC}, {sC}, 1
    s_cmp_lt_u32 {sC}, 10
    s_waitcnt lgkmcnt(0)
    s_cbranch_scc1 P1_dloop
    """)
    ST(4)
    dmfma(1, 1)
    stats_publish()
    a("s_waitcnt lgkmcnt(0)\ns_barrier")
    st = bufX[0]; vMb = V(); vDen = V(); vRstd = V(); augX = pE; augF = pO
    stats_read(st)
    vStepR = V(); vBaseR = V(); Rv = gen; rs = bufF[0]
    a(f"""
    v_lshrrev_b32 {vT1}, 1, {vN1}
    v_cvt_f32_u32 {vT1}, {vT1}                  ; kappa
    v_mul_f32 {vStepR}, {fhex(1/32)}, {vT1}
    s_lshl_b32 {sT1}, {sRb}, 2
    s_add_u32 {sT1}, {sT1}, {sQ}                ; n2
    v_cvt_f32_u32 {vBaseR}, {sT1}
    v_mul_f32 {vBaseR}, {vBaseR}, {vT1}
    v_mul_f32 {vBaseR}, {fhex(1/2048)}, {vBaseR}
    v_and_b32 {vT1}, 1, {vN1}
    v_cvt_f32_u32 {vT1}, {vT1}
    v_fmac_f32 {vBaseR}, {fhex(-0.25)}, {vT1}
    v_cmp_eq_u32 vcc, 1, {vN1}
    v_cvt_f32_u32 {vT1}, {vH}
    v_mul_f32 {vT1}, 4.0, {vT1}
    v_cndmask_b32 {vStepR}, {vStepR}, 0.5, vcc
    v_cndmask_b32 {vBaseR}, {vBaseR}, 0, vcc
    v_fmac_f32 {vBaseR}, {vT1}, {vStepR}         ; + 4h*step
    """)
    for i in range(16):
        n1 = (i % 4) + 8 * (i // 4)
        if n1 == 0: a(f"v_cos_f32 {Rv[0]}, {vBaseR}")
        else: a(f"v_fmamk_f32 {Rv[i]}, {vStepR}, {fhex(n1)}, {vBaseR}\nv_cos_f32 {Rv[i]}, {Rv[i]}")
    a("s_waitcnt lgkmcnt(0)")
    stats_sum(st)
    row_stats_finish(a, V, st[0], st[1], vT0, vMb, vDen, vRstd)
    a(f"""
    s_lshl_b32 {sT0}, {sW}, 7
    s_add_u32 {sT0}, {sT0}, {RSTD_OFF}
    v_lshl_add_u32 {vT0}, {vN1}, 2, {sT0}
    ds_write_b32 {vT0}, {vRstd}
    v_cmp_eq_u32 vcc, 0, {vH}
    v_lshrrev_b32 {vT1}, 16, {vMb}
    v_mov_b32 {vT2}, 0xc3a0                      ; bf16(-320)
    v_cndmask_b32 {augX[0]}, 0, {vT1}, vcc
    v_cndmask_b32 {augF[0]}, 0, {vT2}, {sMask}
    """)
    for i in range(1, 4): a(f"v_mov_b32 {augX[i]}, 0\nv_mov_b32 {augF[i]}, 0")
    a(f"""
    v_lshl_add_u32 {vT0}, {vH}, 4, {sT0}
    s_waitcnt lgkmcnt(0)
    {MF32} {acc[0]}, {augX}, {augF}, {acc[0]}
    {MF32} {acc[2]}, {augX}, {augF}, {acc[2]}
    """)
    for i in range(4): a(f"ds_read_b128 {rs[4*i:4*i+4]}, {vT0} offset:{32*i}")
    vMu = V(); tt = bufF[1]
    a(f"""
    v_cndmask_b32 {vMu}, 1.0, 0, {sMask}
    s_waitcnt lgkmcnt(0)
    """)
    for i in range(16): a(f"v_mul_f32 {Rv[i]}, {Rv[i]}, {rs[i]}")
    for i in range(8): a(f"v_cvt_pk_bf16_f32 {Rv[i]}, {Rv[2*i]}, {Rv[2*i+1]}")
    for i in range(16):
        a(f"v_fma_f32 {tt[i]}, {vMu}, {acc[3][i]}, {acc[1][i]}\nv_fma_f32 {acc[3][i]}, -{vMu}, {acc[1][i]}, {acc[3][i]}")
    for i in range(16):
        a(f"v_sub_f32 {acc[1][i]}, {acc[0][i]}, {acc[2][i]}\nv_add_f32 {acc[0][i]}, {acc[0][i]}, {acc[2][i]}")
    B = [bufX[0], bufX[1], rs[0:8], rs[8:16]]
    for src, dst in ((acc[0], B[0]), (acc[1], B[1]), (tt, B[2]), (acc[3], B[3])):
        for i in range(8): a(f"v_cvt_pk_bf16_f32 {dst[i]}, {src[2*i]}, {src[2*i+1]}")
    for i in range(8):
        a(f"v_cndmask_b32 {tt[i]}, {B[1][i]}, {B[2][i]}, {sMask}\nv_cndmask_b32 {B[2][i]}, {B[2][i]}, {B[1][i]}, {sMask}")
    B[1] = tt[0:8]
    a("s_nop 1")
    for t in range(4): a(f"{MF32} {acc[t]}, {Rv[0:4]}, {B[t][0:4]}, 0")
    for t in range(4): a(f"{MF32} {acc[t]}, {Rv[4:8]}, {B[t][4:8]}, {acc[t]}")
    ST(5)
    vO1 = V(); vO2 = V()
    a(f"""
    s_lshl_b32 {sT0}, {sUnit}, 5
    v_add_u32 {vT0}, {sT0}, {vN1}                ; k
    v_sub_u32 {vT1}, 320, {vT0}
    v_mov_b32 {vT2}, 160
    v_cndmask_b32 {vT1}, {vT1}, {vT2}, {sMask}
    s_mov_b32 {sT0}, {4*64*1280}
    v_mul_lo_u32 {vT2}, {vH}, {sT0}
    v_lshl_add_u32 {vO1}, {vT0}, 2, {vT2}
    v_lshl_add_u32 {vO2}, {vT1}, 2, {vT2}
    s_mul_i32 {sT1}, {sT1}, 1280                 ; n2*1280
    s_nop 7
    """)
    for i in range(16):
        r = (i % 4) + 8 * (i // 4)
        a(f"""
        s_add_u32 {sT0}, {sT1}, {r*64*1280}
        v_cvt_pk_bf16_f32 {acc[0][i]}, {acc[0][i]}, {acc[2][i]}
        v_cvt_pk_bf16_f32 {acc[1][i]}, {acc[1][i]}, {acc[3][i]}
        buffer_store_dword {acc[0][i]}, {vO1}, {rOut}, {sT0} offen
        buffer_store_dword {acc[1][i]}, {vO2}, {rOut}, {sT0} offen
        """)
    ST(6); ST(7); ST.flush(pWS, sW)
    a(f"{Lend}:\ns_endpgm")
    return a.text(), max(hi_m, V.hi)
if __name__ == "__main__":
    t, nv = gen_p1()
    print("vgprs", nv)
    open("p1.s", "w").write(module([("p1_kernel", t, nv, None)], [("p1_kernel", 256, 512, P1_LDS)]))
```

```python
from asmlib import *
from k_p1 import WS_H, WS_V, WS_P, WS_Z, H_BYTES, V_BYTES, P_BYTES, Z_BYTES, W_BYTES, MF32
MF16 = "v_mfma_f32_16x16x32_bf16"
SLOT = 36864
P2_LDS = 4 * SLOT
W2_BYTES = 1728 * 1280

def gen_p2(stamp=False):
    a = Asm("P2")
    ST = Stamps(a, 1, stamp)
    S = Alloc('s', 3, 72); V = Alloc('v', 1, 256)
    pA = S(4); pW2 = S(2); pWS = S(2)
    r0 = S(4); r1 = S(4); r2 = S(4); r3 = S(4)
    sW, sQ, sT0, sT1, sT2, sXcd, sIdx, sRb, sTau, sCb, sC, sSlot, sSoH, sSoW, sKap, sT, sCk = [S() for _ in range(17)]
    sMu = S(2); sMask = S(2)
    vL = V(); vT0 = V(); vT1 = V(); vT2 = V(); vL16 = V()
    a(f"""
    s_cmp_ge_u32 s2, 256
    s_cbranch_scc1 P2_end
    """)
    ST(0); ST.init()
    a(f"""
    s_load_dwordx4 {pA}, s[0:1], 8
    s_load_dwordx2 {pW2}, s[0:1], 48
    s_load_dwordx2 {pWS}, s[0:1], 80
    v_lshrrev_b32 {vT0}, 6, v0
    v_and_b32 {vL}, 63, v0
    v_readfirstlane_b32 {sW}, {vT0}
    v_lshlrev_b32 {vL16}, 4, {vL}
    s_and_b32 {sXcd}, s2, 7
    s_lshr_b32 {sIdx}, s2, 3
    s_and_b32 {sQ}, {sW}, 3
    s_cmp_ge_u32 {sIdx}, 24
    s_cbranch_scc1 P2_t2
    s_mul_i32 {sT0}, {sXcd}, 6
    s_lshr_b32 {sT1}, {sIdx}, 2
    s_add_u32 {sT0}, {sT0}, {sT1}
    s_and_b32 {sRb}, {sT0}, 15
    s_lshr_b32 {sTau}, {sT0}, 4
    s_and_b32 {sCb}, {sIdx}, 3
    s_cmp_lt_u32 {sW}, 4
    s_cbranch_scc1 P2_comp
    """)
    mark = V.mark()
    vOffW = V(5)
    for i in range(5):
        a(f"""
        s_mul_i32 {sT0}, {sQ}, 320
        s_add_u32 {sT0}, {sT0}, {64*i}
        v_add_u32 {vT0}, {sT0}, {vL}              ; G
        v_mul_u32_u24 {vT1}, 3277, {vT0}
        v_lshrrev_b32 {vT1}, 16, {vT1}            ; row = G/20
        v_mul_u32_u24 {vT2}, 20, {vT1}
        v_sub_u32 {vT0}, {vT0}, {vT2}             ; c16
        v_mul_u32_u24 {vT1}, 1280, {vT1}
        v_lshl_add_u32 {vOffW[i]}, {vT0}, 4, {vT1}
        """)
    a(f"""
    s_lshl_b32 {sCk}, {sCb}, 1
    s_add_u32 {sCk}, {sCk}, {sT1}
    s_cmp_ge_u32 {sCk}, 9
    s_cselect_b32 {sT0}, 9, 0
    s_sub_u32 {sCk}, {sCk}, {sT0}
    s_mul_i32 {sSoW}, {sTau}, {576*1280}
    s_mul_i32 {sT0}, {sCb}, 320
    s_add_u32 {sSoW}, {sSoW}, {sT0}
    s_lshl_b32 {sT0}, {sRb}, 2
    s_add_u32 {sT0}, {sT0}, {sQ}
    s_mul_i32 {sT0}, {sT0}, 108
    s_mul_i32 {sT1}, {sTau}, 36
    s_add_u32 {sT0}, {sT0}, {sT1}
    s_lshl_b32 {sSoH}, {sT0}, 10
    s_mov_b32 {sSlot}, 0
    s_mov_b32 {sC}, 0
    s_waitcnt lgkmcnt(0)
    """)
    ST(1)
    a.srd(r0, pW2[0], pW2[1], W2_BYTES)
    a.srd_off(r1, pWS, WS_H, H_BYTES)
    a(f"""
    P2_lloop:
    s_cmp_lt_u32 {sC}, 3
    s_cbranch_scc1 P2_lissue
    s_waitcnt vmcnt(18)
    s_barrier
    s_cmp_ge_u32 {sC}, 9
    s_cselect_b32 {r0[2]}, 0, {r0[2]}
    s_cselect_b32 {r1[2]}, 0, {r1[2]}
    P2_lissue:
    s_lshl_b32 {sT0}, {sQ}, 12
    s_add_u32 {sT0}, {sT0}, {sSlot}
    s_add_u32 m0, {sT0}, 20480
    s_lshl_b32 {sT1}, {sCk}, 12
    s_add_u32 {sT1}, {sT1}, {sSoH}
    """)
    for i in range(4): a(f"buffer_load_dwordx4 {vL16}, {r1}, {sT1} offen offset:{1024*i} lds")
    a(f"""
    s_mul_i32 {sT0}, {sQ}, 5120
    s_add_u32 m0, {sT0}, {sSlot}
    s_mul_i32 {sT1}, {sCk}, {64*1280}
    s_add_u32 {sT1}, {sT1}, {sSoW}
    """)
    for i in range(5):
        a(f"buffer_load_dwordx4 {vOffW[i]}, {r0}, {sT1} offen lds")
        if i < 4: a("s_add_u32 m0, m0, 1024\ns_nop 0")
    a(f"""
    s_add_u32 {sCk}, {sCk}, 1
    s_cmp_eq_u32 {sCk}, 9
    s_cselect_b32 {sCk}, 0, {sCk}
    s_add_u32 {sSlot}, {sSlot}, {SLOT}
    s_cmp_eq_u32 {sSlot}, {4*SLOT}
    s_cselect_b32 {sSlot}, 0, {sSlot}
    s_add_u32 {sC}, {sC}, 1
    s_cmp_lt_u32 {sC}, 12
    s_cbranch_scc1 P2_lloop
    """)
    ST.flush(pWS, sW)
    a("s_endpgm")
    V.release(mark)
    acc = [V(16) for _ in range(5)]
    bufH = [V(4), V(4)]; bufW = [[V(4) for _ in range(5)] for _ in range(2)]
    vWb = V(); vHb = V(); vWs = V(); vHs = V()
    a(f"""
    P2_comp:
    v_and_b32 {vT0}, 15, {vL}
    v_lshrrev_b32 {vT0}, 2, {vT0}
    v_lshrrev_b32 {vT1}, 5, {vL}
    v_lshl_add_u32 {vT0}, {vT1}, 2, {vT0}       ; 4h + i/4
    v_mul_u32_u24 {vWb}, 320, {vT0}
    v_and_b32 {vT1}, 16, {vL}
    v_lshl_add_u32 {vWb}, {vT1}, 1, {vWb}
    v_and_b32 {vT1}, 3, {vL}
    v_lshl_add_u32 {vWb}, {vT1}, 3, {vWb}
    s_lshl_b32 {sT0}, {sQ}, 12
    s_add_u32 {sT0}, {sT0}, 20480
    v_add_u32 {vHb}, {sT0}, {vL16}
    """)
    for r in acc + [bufH[1]] + bufW[1]:
        for i in range(r.n): a(f"v_mov_b32 {r[i]}, 0")
    a("s_waitcnt lgkmcnt(0)")
    a.srd_off(r2, pWS, WS_Z, Z_BYTES)
    ST(1)
    a(f"""
    s_mov_b32 {sC}, 0
    s_mov_b32 {sSlot}, 0
    P2_cloop:
    s_barrier
    """)
    if stamp: a(f"s_cmp_lg_u32 {sC}, 0\ns_cbranch_scc1 P2_nost"); ST(2); a("P2_nost:")
    a(f"""
    v_add_u32 {vWs}, {sSlot}, {vWb}
    v_add_u32 {vHs}, {sSlot}, {vHb}
    """)
    def step(ks_read, b_read, b_mf):
        reads = []
        if ks_read is not None:
            reads.append(f"ds_read_b128 {bufH[b_read]}, {vHs} offset:{ks_read*1024}")
            for t in range(5):
                for e in range(2):
                    reads.append(f"ds_read_b64_tr_b16 {bufW[b_read][t][2*e:2*e+2]}, {vWs} offset:{(16*ks_read+8*e)*320 + t*64}")
        sched = [4, 4, 3, 0, 0]
        for t in range(5):
            a(f"{MF32} {acc[t]}, {bufW[b_mf][t]}, {bufH[b_mf]}, {acc[t]}")
            for _ in range(sched[t]):
                if reads: a(reads.pop(0))
    for ks in range(4):
        step(ks, ks % 2, (ks + 1) % 2)
        if ks == 3:
            a(f"""
            s_add_u32 {sSlot}, {sSlot}, {SLOT}
            s_cmp_eq_u32 {sSlot}, {4*SLOT}
            s_cselect_b32 {sSlot}, 0, {sSlot}
            s_add_u32 {sC}, {sC}, 1
            s_cmp_lt_u32 {sC}, 9
            """)
        a("s_waitcnt lgkmcnt(0)")
    a("s_cbranch_scc1 P2_cloop")
    ST(3)
    step(None, 0, 1)
    a(f"""
    s_lshl_b32 {sT0}, {sTau}, 6
    s_lshl_b32 {sT1}, {sRb}, 2
    s_add_u32 {sT0}, {sT0}, {sT1}
    s_add_u32 {sT0}, {sT0}, {sQ}
    s_mul_i32 {sT0}, {sT0}, 20
    s_mul_i32 {sT1}, {sCb}, 5
    s_add_u32 {sT0}, {sT0}, {sT1}
    s_lshl_b32 {sT0}, {sT0}, 11
    s_nop 1
    """)
    for t in range(5):
        for i in range(8): a(f"v_cvt_pk_bf16_f32 {acc[t][i]}, {acc[t][2*i]}, {acc[t][2*i+1]}")
        a(f"""
        buffer_store_dwordx4 {acc[t][0:4]}, {vL16}, {r2}, {sT0} offen
        buffer_store_dwordx4 {acc[t][4:8]}, {vL16}, {r2}, {sT0} offen offset:1024
        s_add_u32 {sT0}, {sT0}, 2048
        """)
    ST(4); ST.flush(pWS, sW)
    a("s_endpgm")
    hi = V.hi
    V.release(mark)
    vG = V(); vM = V(); vKd = V(); vOffV = V(); vOffWt = V(); vOffW2 = V(); vSelR = V(); vSelI = V()
    raw = [V(16), V(16)]
    Wr = [V(16), V(16)]; Wi = [V(16), V(16)]
    gen = V(16); vStep = V(); vBase = V(); vI0 = V(); vLf = V()
    sEps = S(); sPh = S(); sHas = S()
    a(f"""
    P2_t2:
    s_lshl_b32 {sT0}, {sXcd}, 3
    s_add_u32 {sT0}, {sT0}, {sIdx}
    s_sub_u32 {sT0}, {sT0}, 24
    s_lshr_b32 {sKap}, {sT0}, 2
    s_and_b32 {sT0}, {sT0}, 3           ; qq
    s_mul_i32 {sT}, {sT0}, 5
    s_add_u32 {sT}, {sT}, {sW}          ; T
    s_cmp_lt_u32 {sW}, 5
    s_cselect_b32 {sHas}, 1, 0
    s_cmp_eq_u32 {sT}, 20
    s_cselect_b32 {sHas}, 1, {sHas}
    s_cmp_eq_u32 {sKap}, 0
    s_cselect_b32 {sMu[0]}, 0, 1.0
    s_cselect_b32 {sMu[1]}, 0, 1.0
    s_cselect_b32 {sEps}, 0.5, 0
    s_cselect_b32 {sPh}, 0, {fhex(0.25)}
    v_lshrrev_b32 {vG}, 4, {vL}
    v_and_b32 {vM}, 15, {vL}
    s_waitcnt lgkmcnt(0)
    """)
    ST(1)
    a.srd(r0, pA[0], pA[1], W_BYTES)
    a.srd(r1, pA[2], pA[3], W_BYTES)
    a.srd_off(r2, pWS, WS_V, V_BYTES)
    a.srd_off(r3, pWS, WS_P, P_BYTES)
    a(f"""
    s_cmp_eq_u32 {sHas}, 0
    s_cbranch_scc1 P2_tgen
    ; kd = 16T + 8(m>>3) + 2(m&3) + ((m>>2)&1)
    v_and_b32 {vT0}, 8, {vM}
    v_and_b32 {vT1}, 3, {vM}
    v_lshl_add_u32 {vT0}, {vT1}, 1, {vT0}
    v_bfe_u32 {vT1}, {vM}, 2, 1
    s_lshl_b32 {sT0}, {sT}, 4
    v_add3_u32 {vKd}, {vT0}, {vT1}, {sT0}
    v_mul_u32_u24 {vT0}, 5120, {vG}
    v_lshl_add_u32 {vOffV}, {vKd}, 2, {vT0}
    v_cmp_eq_u32 vcc, 320, {vKd}
    v_mov_b32 {vSelR}, 0x05040100
    v_mov_b32 {vSelI}, 0x07060302
    v_cndmask_b32 {vOffV}, {vOffV}, {vT0}, vcc
    v_cndmask_b32 {vSelR}, {vSelR}, {vSelI}, vcc
    v_cmp_eq_u32 {sMask}, 0, {vKd}
    v_mov_b32 {vT1}, 0x0c0c0c0c
    s_or_b64 {sMask}, {sMask}, vcc
    v_cmp_lt_u32 vcc, 320, {vKd}
    v_cndmask_b32 {vSelI}, {vSelI}, {vT1}, {sMask}
    v_mov_b32 {vT1}, 0x7f000000
    v_cndmask_b32 {vOffV}, {vOffV}, {vT1}, vcc
    s_mul_i32 {sT0}, {sKap}, {2*81920}
    """)
    for sg in range(2):
        for b in range(4):
            a(f"s_add_u32 {sT1}, {sT0}, {sg*81920 + 16*b*1280}")
            for j in range(4): a(f"buffer_load_dword {raw[sg][4*b+j]}, {vOffV}, {r2}, {sT1} offen offset:{1280*j}")
    a(f"""
    s_mov_b32 {sT1}, {4*20544}
    v_mul_lo_u32 {vT0}, {vG}, {sT1}
    v_lshl_add_u32 {vOffWt}, {vKd}, 1, {vT0}
    s_sub_u32 {sT2}, 0, {sKap}
    s_cmp_eq_u32 {sKap}, 0
    s_cselect_b32 {sT2}, 16, {sT2}              ; kappa2
    v_lshl_add_u32 {vT0}, {vG}, 7, {sT2}
    v_and_b32 {vT0}, 2047, {vT0}
    v_mul_u32_u24 {vT0}, 642, {vT0}
    v_lshl_add_u32 {vOffW2}, {vKd}, 1, {vT0}
    s_mul_i32 {sT0}, {sKap}, 642
    s_mul_i32 {sT2}, {sT2}, 642
    """)
    for mu in range(4):
        for r in range(4):
            i = 4 * mu + r
            a(f"""
            s_add_u32 {sT1}, {sT0}, {(16*mu+r)*20544}
            buffer_load_short_d16_hi {Wr[0][i]}, {vOffWt}, {r0}, {sT1} offen
            buffer_load_short_d16_hi {Wi[0][i]}, {vOffWt}, {r1}, {sT1} offen
            """)
            if i == 0:
                a(f"""buffer_load_short_d16_hi {Wr[1][i]}, {vOffW2}, {r0}, 0 offen
                buffer_load_short_d16_hi {Wi[1][i]}, {vOffW2}, {r1}, 0 offen""")
            else:
                a(f"""
                s_add_u32 {sT1}, {sT2}, {(16*mu+r)*20544}
                buffer_load_short_d16_hi {Wr[1][i]}, {vOffWt}, {r0}, {sT1} offen
                buffer_load_short_d16_hi {Wi[1][i]}, {vOffWt}, {r1}, {sT1} offen
                """)
    a(f"""
    P2_tgen:
    """)
    ST(2)
    a(f"""
    s_lshr_b32 {sT0}, {sW}, 1
    s_lshl_b32 {sT0}, {sT0}, 4
    v_add_u32 {vT0}, {sT0}, {vM}
    v_cvt_f32_u32 {vLf}, {vT0}
    s_and_b32 {sT0}, {sW}, 1
    s_lshl_b32 {sT0}, {sT0}, 5
    v_lshl_add_u32 {vT0}, {vG}, 2, {sT0}
    v_cvt_f32_u32 {vI0}, {vT0}
    s_lshl_b32 {sT0}, {sW}, 11
    v_add_u32 {vT2}, {sT0}, {vL16}
    """)
    for tab in range(3):
        if tab == 0:
            a(f"v_mul_f32 {vStep}, {fhex(1/64)}, {vLf}\nv_mul_f32 {vBase}, {vI0}, {vStep}")
        elif tab == 1:
            a(f"v_add_f32 {vStep}, {sEps}, {vLf}\nv_mul_f32 {vStep}, {fhex(1/64)}, {vStep}\nv_fma_f32 {vBase}, {vI0}, {vStep}, -{sPh}")
        else:
            a(f"v_mul_f32 {vStep}, {fhex(1/64)}, {vLf}\nv_add_f32 {vT0}, {sEps}, {vI0}\nv_fma_f32 {vBase}, {vT0}, {vStep}, {sPh}")
        for j in range(8):
            o = (j % 4) + 16 * (j // 4)
            if o == 0: a(f"v_cos_f32 {gen[0]}, {vBase}\nv_sin_f32 {gen[8]}, {vBase}")
            else: a(f"v_fmamk_f32 {gen[8+j]}, {vStep}, {fhex(o)}, {vBase}\nv_cos_f32 {gen[j]}, {gen[8+j]}\nv_sin_f32 {gen[8+j]}, {gen[8+j]}")
        for j in range(8): a(f"v_cvt_pk_bf16_f32 {gen[j]}, {gen[2*j]}, {gen[2*j+1]}")
        a(f"ds_write_b128 {vT2}, {gen[0:4]} offset:{tab*16384}\nds_write_b128 {vT2}, {gen[4:8]} offset:{tab*16384+1024}")
        a("s_waitcnt lgkmcnt(0)")
    a(f"""
    s_barrier
    s_cmp_eq_u32 {sHas}, 0
    s_cbranch_scc1 P2_end
    """)
    dat = [[V(8) for _ in range(3)] for _ in range(2)]
    tb = [V(16), V(16)]
    accR = [raw[0], raw[1]]; accN = [gen, V(16)]
    ST(3)
    a("s_waitcnt vmcnt(63)")
    for sg in range(2):
        for i in range(8):
            a(f"""v_perm_b32 {dat[sg][0][i]}, {raw[sg][2*i+1]}, {raw[sg][2*i]}, {vSelR}
            v_perm_b32 {dat[sg][1][i]}, {raw[sg][2*i+1]}, {raw[sg][2*i]}, {vSelI}
            v_xor_b32 {dat[sg][2][i]}, 0x80008000, {dat[sg][1][i]}""")
    def xform(tabs, fwd):
        for t in range(4):
            for sg in range(2):
                for i in range(4): a(f"ds_read_b128 {tb[sg][4*i:4*i+4]}, {vL16} offset:{tabs[sg]*16384 + t*4096 + i*1024}")
            for sg in range(2):
                a(f"s_waitcnt lgkmcnt({4 if sg == 0 else 0})")
                R = accR[sg][4*t:4*t+4]; N = accN[sg][4*t:4*t+4]
                for e in range(2):
                    Tc = tb[sg][8*e:8*e+4]; Ts = tb[sg][8*e+4:8*e+8]
                    dR, dI, dN = (dat[sg][k][4*e:4*e+4] for k in range(3))
                    def mf(acc_, T, dd, first):
                        A_, B_ = (T, dd) if fwd else (dd, T)
                        a(f"{MF16} {acc_}, {A_}, {B_}, {0 if first else acc_}")
                    mf(R, Tc, dR, e == 0); mf(N, Tc, dI, e == 0); mf(R, Ts, dN, False); mf(N, Ts, dR, False)
    a("s_nop 1")
    xform((0, 1), True)
    ST(4)
    a("s_waitcnt vmcnt(0)\ns_nop 7")
    ST(5)
    x = [tb[0][2*i:2*i+2] for i in range(8)]
    NEG0 = "neg_lo:[1,0,0] neg_hi:[1,0,0]"
    for p in range(8):
        sl = slice(2*p, 2*p+2)
        aR, aN, bR, bN = accR[0][sl], accN[0][sl], accR[1][sl], accN[1][sl]
        a(f"""
        v_pk_fma_f32 {x[0]}, {bR}, {sMu}, {aR} {NEG0}
        v_pk_fma_f32 {x[1]}, {bN}, {sMu}, {aN} {NEG0}
        v_pk_fma_f32 {x[2]}, {aR}, {sMu}, {bR}
        v_pk_fma_f32 {x[3]}, {aN}, {sMu}, {bN}
        v_pk_mul_f32 {x[4]}, {x[0]}, {Wr[0][sl]}
        v_pk_mul_f32 {x[5]}, {x[0]}, {Wi[0][sl]}
        v_pk_mul_f32 {x[6]}, {x[2]}, {Wr[1][sl]}
        v_pk_mul_f32 {x[7]}, {x[2]}, {Wi[1][sl]}
        v_pk_fma_f32 {x[4]}, {x[1]}, {Wi[0][sl]}, {x[4]}
        v_pk_fma_f32 {x[5]}, {x[1]}, {Wr[0][sl]}, {x[5]} {NEG0}
        v_pk_fma_f32 {x[6]}, {x[3]}, {Wi[1][sl]}, {x[6]}
        v_pk_fma_f32 {x[7]}, {x[3]}, {Wr[1][sl]}, {x[7]} {NEG0}
        v_pk_fma_f32 {x[0]}, {x[6]}, {sMu}, {x[4]}
        v_pk_fma_f32 {x[1]}, {x[7]}, {sMu}, {x[5]}
        v_pk_fma_f32 {x[2]}, {x[4]}, {sMu}, {x[6]} {NEG0}
        v_pk_fma_f32 {x[3]}, {x[5]}, {sMu}, {x[7]} {NEG0}
        v_cvt_pk_bf16_f32 {dat[0][0][p]}, {x[0][0]}, {x[0][1]}
        v_cvt_pk_bf16_f32 {dat[0][1][p]}, {x[1][0]}, {x[1][1]}
        v_cvt_pk_bf16_f32 {dat[0][2][p]}, -{x[1][0]}, -{x[1][1]}
        v_cvt_pk_bf16_f32 {dat[1][0][p]}, {x[2][0]}, {x[2][1]}
        v_cvt_pk_bf16_f32 {dat[1][1][p]}, {x[3][0]}, {x[3][1]}
        v_cvt_pk_bf16_f32 {dat[1][2][p]}, -{x[3][0]}, -{x[3][1]}
        """)
    ST(6)
    xform((0, 2), False)
    ST(7)
    a(f"""
    s_lshr_b32 {sT0}, {sKap}, 1
    s_and_b32 {sT0}, {sT0}, 3
    v_xor_b32 {vT0}, {sT0}, {vG}
    v_mul_u32_u24 {vT1}, 43008, {vM}
    v_lshl_add_u32 {vT0}, {vT0}, 5, {vT1}
    s_lshl_b32 {sT0}, {sT}, 11
    s_lshl_b32 {sT1}, {sKap}, 7
    s_add_u32 {sT0}, {sT0}, {sT1}
    """)
    for t in range(4):
        for sg in range(2):
            for r in range(4): a(f"v_cvt_pk_bf16_f32 {accR[sg][4*t+r]}, {accR[sg][4*t+r]}, {accN[sg][4*t+r]}")
            a(f"buffer_store_dwordx4 {accR[sg][4*t:4*t+4]}, {vT0}, {r3}, {sT0} offen offset:{16*sg}")
        a(f"s_add_u32 {sT0}, {sT0}, {16*43008}")
    ST.flush(pWS, sW)
    a("P2_end:\ns_endpgm")
    return a.text(), max(hi, V.hi)
if __name__ == "__main__":
    t, nv = gen_p2()
    print("vgprs", nv)
    open("p2.s", "w").write(module([("p2_kernel", t, nv, None)], [("p2_kernel", 256, 512, P2_LDS)]))
```

```python
from asmlib import *
from k_p1 import WS_P, WS_Z, P_BYTES, Z_BYTES, X_BYTES
from k_p2 import MF16
P3_LDS = 45056
def gen_p3(stamp=False):
    a = Asm("P3")
    ST = Stamps(a, 2, stamp)
    S = Alloc('s', 3, 72); V = Alloc('v', 1, 256)
    pX = S(2); pB = S(4); pWS = S(2)
    rP = S(4); rZ = S(4); rX = S(4); rB = S(4); rO = S(4)
    sW, sT0, sT1, sT2, sN2, sT16 = [S() for _ in range(6)]
    sMask = S(2)
    vL = V(); vT0 = V(); vT1 = V(); vT2 = V(); vL16 = V(); vG = V(); vM = V()
    vOffZ = V(); vOffX = V()
    z = [[[V(2) for nu in range(2)] for sg in range(2)] for tau in range(3)]
    xr = [[V(2) for nu in range(2)] for sg in range(2)]
    b2 = [V(2), V(2)]
    a(f"""
    s_cmp_ge_u32 s2, 320
    s_cbranch_scc1 P3_end
    """)
    ST(0); ST.init()
    a(f"""
    s_load_dwordx2 {pX}, s[0:1], 0
    s_load_dwordx4 {pB}, s[0:1], 56
    s_load_dwordx2 {pWS}, s[0:1], 80
    v_lshrrev_b32 {vT0}, 6, v0
    v_and_b32 {vL}, 63, v0
    v_readfirstlane_b32 {sW}, {vT0}
    v_lshlrev_b32 {vL16}, 4, {vL}
    v_lshrrev_b32 {vG}, 4, {vL}
    v_and_b32 {vM}, 15, {vL}
    s_and_b32 {sT0}, s2, 7
    s_lshr_b32 {sT1}, s2, 3
    s_mul_i32 {sT2}, {sT1}, 52
    s_lshr_b32 {sT2}, {sT2}, 8          ; idx/5
    s_lshl_b32 {sN2}, {sT0}, 3
    s_add_u32 {sN2}, {sN2}, {sT2}
    s_mul_i32 {sT2}, {sT2}, 5
    s_sub_u32 {sT1}, {sT1}, {sT2}       ; db
    s_lshl_b32 {sT16}, {sT1}, 2
    s_add_u32 {sT16}, {sT16}, {sW}
    ; z offset: lane' = n1%16 + 32(g&1) (+16 nu), byte 8(g>>1)
    v_and_b32 {vT0}, 1, {vG}
    v_lshl_add_u32 {vT0}, {vT0}, 5, {vM}
    v_lshlrev_b32 {vT0}, 4, {vT0}
    v_lshrrev_b32 {vT1}, 1, {vG}
    v_lshl_add_u32 {vOffZ}, {vT1}, 3, {vT0}
    s_mov_b32 {sT0}, {64*1280}
    v_mul_lo_u32 {vT0}, {vM}, {sT0}
    v_lshl_add_u32 {vOffX}, {vG}, 3, {vT0}
    s_waitcnt lgkmcnt(0)
    """)
    ST(1)
    a.srd_off(rP, pWS, WS_P, P_BYTES)
    a.srd_off(rZ, pWS, WS_Z, Z_BYTES)
    a.srd(rX, pX[0], pX[1], X_BYTES)
    a.srd(rB, pB[0], pB[1], 1280)
    a.srd(rO, pB[2], pB[3], X_BYTES)
    a(f"""
    s_mul_i32 {sT0}, {sN2}, 43008
    s_lshl_b32 {sT1}, {sW}, 10
    s_add_u32 {sT0}, {sT0}, {sT1}
    s_mov_b32 m0, {sT1}
    """)
    for i in range(11):
        a(f"s_nop 0\nbuffer_load_dwordx4 {vL16}, {rP}, {sT0} offen lds")
        if i < 10: a(f"s_add_u32 {sT0}, {sT0}, 4096\ns_add_u32 m0, m0, 4096")
    a(f"""
    s_mul_i32 {sT0}, {sN2}, 40
    s_add_u32 {sT0}, {sT0}, {sT16}
    s_lshl_b32 {sT0}, {sT0}, 10
    """)
    for tau in range(3):
        for sg in range(2):
            a(f"s_add_u32 {sT1}, {sT0}, {tau*64*40*1024 + sg*20*1024}")
            for nu in range(2): a(f"buffer_load_dwordx2 {z[tau][sg][nu]}, {vOffZ}, {rZ}, {sT1} offen offset:{256*nu}")
    sXo = S(); sXo1 = S()
    a(f"""
    s_mul_i32 {sXo}, {sN2}, 1280
    s_lshl_b32 {sT1}, {sT16}, 5
    s_add_u32 {sXo}, {sXo}, {sT1}
    s_add_u32 {sXo1}, {sXo}, {16*64*1280}
    v_lshlrev_b32 {vT0}, 3, {vG}
    """)
    for sg in range(2):
        a(f"buffer_load_dwordx2 {xr[sg][0]}, {vOffX}, {rX}, {sXo} offen offset:{640*sg}")
        a(f"buffer_load_dwordx2 {xr[sg][1]}, {vOffX}, {rX}, {sXo1} offen offset:{640*sg}")
        a(f"buffer_load_dwordx2 {b2[sg]}, {vT0}, {rB}, {sT1} offen offset:{640*sg}")
    ST(2)
    G = [[V(4) for w in range(10)] for p in range(2)]; G10 = V(4)
    st = [[V(2) for i in range(8)] for k in range(2)]
    vStep = V(); vBase = V(); vC2 = V(2)
    a(f"""
    s_lshl_b32 {sT0}, {sT16}, 4
    v_add_u32 {vT0}, {sT0}, {vM}                 ; d
    v_cvt_f32_u32 {vStep}, {vT0}
    v_mul_f32 {vStep}, {fhex(1/640)}, {vStep}
    v_and_b32 {vT1}, 1, {vG}
    v_lshlrev_b32 {vT1}, 4, {vT1}
    v_lshrrev_b32 {vT2}, 1, {vG}
    v_lshl_add_u32 {vT1}, {vT2}, 3, {vT1}
    v_cvt_f32_u32 {vT1}, {vT1}
    v_mul_f32 {vBase}, {vT1}, {vStep}
    v_mul_f32 {vT1}, {fhex(32.0)}, {vStep}
    v_cos_f32 {vT1}, {vT1}
    v_cmp_eq_u32 {sMask}, 0, {vG}
    v_add_f32 {vC2[0]}, {vT1}, {vT1}
    v_add_f32 {vC2[1]}, {vT1}, {vT1}
    v_and_b32 {vT0}, 1, {vT0}
    v_lshlrev_b32 {vT0}, 15, {vT0}
    v_or_b32 {vT0}, 0x3f00, {vT0}
    v_cndmask_b32 {G10[0]}, 0, {vT0}, {sMask}
    v_mov_b32 {G10[1]}, 0
    v_mov_b32 {G10[2]}, 0
    v_mov_b32 {G10[3]}, 0
    """)
    for w in range(10):
        cur = st[w % 2]
        if w < 2:
            for i in range(8):
                o = 32 * w + i
                if o == 0: a(f"v_cos_f32 {cur[i][0]}, {vBase}\nv_sin_f32 {cur[i][1]}, -{vBase}")
                else: a(f"v_fmamk_f32 {cur[i][1]}, {vStep}, {fhex(o)}, {vBase}\nv_cos_f32 {cur[i][0]}, {cur[i][1]}\nv_sin_f32 {cur[i][1]}, -{cur[i][1]}")
        else:
            for i in range(8): a(f"v_pk_fma_f32 {cur[i]}, {st[(w+1)%2][i]}, {vC2}, {cur[i]} neg_lo:[0,0,1] neg_hi:[0,0,1]")
        for i in range(8): a(f"v_cvt_pk_bf16_f32 {G[i%2][w][i//2]}, {cur[i][0]}, {cur[i][1]}")
        if w == 0:
            a(f"v_mov_b32 {vT0}, 0x3f00\nv_cndmask_b32 {G[0][0][0]}, {G[0][0][0]}, {vT0}, {sMask}")
    Rf = [V(4), V(4)]
    for nu in range(2):
        a(f"""
        v_lshlrev_b32 {vT0}, 6, {vM}
        s_add_u32 {sT0}, {sN2}, {1024*nu}
        v_add_u32 {vT0}, {sT0}, {vT0}
        v_cvt_f32_u32 {vStep}, {vT0}
        v_mul_f32 {vStep}, {fhex(1/2048)}, {vStep}
        v_lshlrev_b32 {vT1}, 1, {vG}
        v_cvt_f32_u32 {vT1}, {vT1}
        v_mul_f32 {vBase}, {vT1}, {vStep}
        """)
        for i in range(4):
            o = 8 * (i // 2) + (i % 2); cur = st[0][i]
            if o == 0: a(f"v_cos_f32 {cur[0]}, {vBase}\nv_sin_f32 {cur[1]}, -{vBase}")
            else: a(f"v_fmamk_f32 {cur[1]}, {vStep}, {fhex(o)}, {vBase}\nv_cos_f32 {cur[0]}, {cur[1]}\nv_sin_f32 {cur[1]}, -{cur[1]}")
        a(f"""
        v_lshlrev_b32 {vT0}, 31, {vM}
        v_or_b32 {vT0}, 1.0, {vT0}
        v_cndmask_b32 {st[0][0][1]}, {st[0][0][1]}, {vT0}, {sMask}
        """)
        for i in range(4): a(f"v_cvt_pk_bf16_f32 {Rf[nu][i]}, {st[0][i][0]}, {st[0][i][1]}")
    ST(3)
    vA = [V(), V()]; vA10 = V()
    a(f"""
    v_lshrrev_b32 {vT0}, 1, {vM}
    v_lshlrev_b32 {vT0}, 7, {vT0}
    v_and_b32 {vT1}, 2, {vG}
    v_lshrrev_b32 {vT2}, 2, {vM}
    v_xor_b32 {vT1}, {vT1}, {vT2}
    v_lshl_add_u32 {vT0}, {vT1}, 5, {vT0}
    v_and_b32 {vT1}, 1, {vM}
    v_lshl_add_u32 {vA10}, {vT1}, 4, {vT0}
    v_and_b32 {vT1}, 1, {vG}
    v_lshl_add_u32 {vA[0]}, {vT1}, 11, {vA10}
    v_xor_b32 {vA[1]}, 32, {vA[0]}
    s_waitcnt vmcnt(18)
    s_barrier
    """)
    ST(4)
    acc = [[V(4) for rho in range(2)] for p in range(2)]
    buf = [V(16), V(16), V(16)]
    def rd(w):
        if w < 10:
            for p in range(2):
                for rho in range(2): a(f"ds_read_b128 {buf[w%3][8*p+4*rho:8*p+4*rho+4]}, {vA[p]} offset:{w*4096+rho*1024}")
        elif w == 10:
            for rho in range(2): a(f"ds_read_b128 {buf[w%3][4*rho:4*rho+4]}, {vA10} offset:{w*4096+rho*1024}")
    rd(0); rd(1)
    for w in range(11):
        rd(w + 2)
        left = sum((4 if u < 10 else 2) for u in (w + 1, w + 2) if u <= 10)
        a(f"s_waitcnt lgkmcnt({left})")
        for p in range(2 if w < 10 else 1):
            for rho in range(2):
                g = G[p][w] if w < 10 else G10
                a(f"{MF16} {acc[p][rho]}, {buf[w%3][8*p+4*rho:8*p+4*rho+4]}, {g}, {0 if w == 0 else acc[p][rho]}")
    a("s_nop 7")
    Q = [buf[0][0:4], buf[0][4:8]]; t = buf[1]
    for rho in range(2):
        for i in range(0, 4, 2):
            a(f"v_pk_add_f32 {t[4*rho+i:4*rho+i+2]}, {acc[0][rho][i:i+2]}, {acc[1][rho][i:i+2]}")
            a(f"v_pk_add_f32 {t[8+4*rho+i:8+4*rho+i+2]}, {acc[0][rho][i:i+2]}, {acc[1][rho][i:i+2]} neg_lo:[0,1] neg_hi:[0,1]")
    for sg in range(2):
        for i in range(4): a(f"v_cvt_pk_bf16_f32 {Q[sg][i]}, {t[8*sg+2*i]}, {t[8*sg+2*i+1]}")
    a("s_nop 1")
    for sg in range(2):
        for nu in range(2): a(f"{MF16} {acc[sg][nu]}, {Q[sg]}, {Rf[nu]}, 0")
    ST(5)
    a("s_waitcnt vmcnt(0)")
    ST(6)
    sSc = S()
    a(f"s_mov_b32 {sSc}, {fhex(2.0/(2048*640))}")
    u = buf[2]
    for sg in range(2):
        for nu in range(2):
            s4 = t[8*sg+4*nu:8*sg+4*nu+4]
            srcs = [xr[sg][nu], b2[sg]] + [z[tau][sg][nu] for tau in range(3)]
            for k, sr in enumerate(srcs):
                dst = s4 if k == 0 else u[0:4]
                a(f"""v_lshlrev_b32 {dst[0]}, 16, {sr[0]}
                v_and_b32 {dst[1]}, 0xffff0000, {sr[0]}
                v_lshlrev_b32 {dst[2]}, 16, {sr[1]}
                v_and_b32 {dst[3]}, 0xffff0000, {sr[1]}""")
                if k: a(f"v_pk_add_f32 {s4[0:2]}, {s4[0:2]}, {u[0:2]}\nv_pk_add_f32 {s4[2:4]}, {s4[2:4]}, {u[2:4]}")
            for i in range(4): a(f"v_fmac_f32 {s4[i]}, {sSc}, {acc[sg][nu][i]}")
            a(f"""v_cvt_pk_bf16_f32 {s4[0]}, {s4[0]}, {s4[1]}
            v_cvt_pk_bf16_f32 {s4[1]}, {s4[2]}, {s4[3]}
            buffer_store_dwordx2 {s4[0:2]}, {vOffX}, {rO}, {sXo1 if nu else sXo} offen offset:{640*sg}""")
    ST(7); ST.flush(pWS, sW)
    a("P3_end:\ns_endpgm")
    return a.text(), V.hi
if __name__ == "__main__":
    t, nv = gen_p3()
    print("vgprs", nv)
    open("p3.s", "w").write(module([("p3_kernel", t, nv, None)], [("p3_kernel", 320, 256, P3_LDS)]))
```

```python
import sys
from asmlib import *
import k_p1, k_p2, k_p3
def touch(kind, n=16):
    a = Asm("T")
    off = 24 if kind != 'ws' else 80
    a(f"""
    s_cmp_ge_u32 s2, 256
    s_cbranch_scc1 T_end
    s_load_dwordx2 s[4:5], s[0:1], {off}
    v_lshlrev_b32 v2, 2, v0
    s_waitcnt lgkmcnt(0)
    s_add_u32 s8, s4, {0 if kind != 'ws' else 0x8000000}
    s_addc_u32 s9, s5, 0
    s_mov_b32 s10, {2048*1280}
    s_mov_b32 s11, 0x20000
    s_mul_i32 s12, s2, 10240
    """)
    for i in range(n):
        a(f"buffer_load_dword v3, v2, s[8:11], s12 offen\ns_add_u32 s12, s12, 512\ns_waitcnt vmcnt(0)")
    a("T_end:\ns_endpgm")
    return a.text()
def gen(kind, n):
    t1, n1 = k_p1.gen_p1(); t2, n2 = k_p2.gen_p2(); t3, n3 = k_p3.gen_p3()
    ks = [("p1_kernel", t1, n1, None), ("p2_kernel", t2, n2, None), ("p3_kernel", t3, n3, None), ("t_kernel", touch(kind, n), 8, None)]
    ls = [("t_kernel", 256, 64, 0), ("p1_kernel", 256, 512, k_p1.P1_LDS), ("p2_kernel", 256, 512, k_p2.P2_LDS), ("p3_kernel", 320, 256, k_p3.P3_LDS)]
    return module(ks, ls)
if __name__ == "__main__":
    for kind, n in (('bx', 1), ('bx', 17), ('ws', 1), ('ws', 17)):
        open(f"probe_{kind}_{n}.s", "w").write(gen(kind, n))
```

```python
import sys
from asmlib import *
import k_p1, k_p2, k_p3
def touch(kb):
    a = Asm("T")
    a(f"""
    s_cmp_ge_u32 s2, 256
    s_cbranch_scc1 T_end
    s_load_dwordx2 s[4:5], s[0:1], 80
    v_lshlrev_b32 v2, 4, v0
    s_waitcnt lgkmcnt(0)
    s_add_u32 s8, s4, 0x8000000
    s_addc_u32 s9, s5, 0
    s_mov_b32 s10, 0x4000000
    s_mov_b32 s11, 0x20000
    s_mul_i32 s12, s2, {kb*1024}
    """)
    for i in range(kb // 8):
        a(f"buffer_load_dwordx4 v[{4+4*i}:{7+4*i}], v2, s[8:11], s12 offen\ns_add_u32 s12, s12, 8192")
    a("s_waitcnt vmcnt(0)\nT_end:\ns_endpgm")
    return a.text()
def gen(kb):
    t1, n1 = k_p1.gen_p1(); t2, n2 = k_p2.gen_p2(); t3, n3 = k_p3.gen_p3()
    ks = [("p1_kernel", t1, n1, None), ("p2_kernel", t2, n2, None), ("p3_kernel", t3, n3, None), ("t_kernel", touch(kb), 128, None)]
    ls = [("t_kernel", 256, 512, 131072), ("p1_kernel", 256, 512, k_p1.P1_LDS), ("p2_kernel", 256, 512, k_p2.P2_LDS), ("p3_kernel", 320, 256, k_p3.P3_LDS)]
    return module(ks, ls)
if __name__ == "__main__":
    for kb in (8, 24, 64, 128): open(f"probe2_{kb}.s", "w").write(gen(kb))
```

```python
from asmlib import *
import math
WS_H, WS_V, WS_P, WS_Z, WS_W2T, WS_WP, WS_FL = 0, 0x800000, 0xB00000, 0x1000000, 0x1800000, 0x1C00000, 0x2000000
H_BYTES = 64*54*2048
V_ROW = 5632; V_BYTES = 16*32*V_ROW
P_GRP = 2*11*2048; P_BYTES = 64*P_GRP
W2T_BYTES = 1728*1280
WP_BYTES = 2048*1408
FL_BYTES = (1024 + 176 + 8)*128
X_BYTES, W1_BYTES, W_BYTES, W2_BYTES = 2048*1280, 640*3456, 2048*642, 1728*1280
NSLOT = 4
RS_OFF = NSLOT*32768; CS_OFF = RS_OFF + 4096; RSTD_OFF = CS_OFF + 512; B1_OFF = RSTD_OFF + 512; RTAB_OFF = B1_OFF + 256
K1_LDS = RTAB_OFF + 16384
MF32 = "v_mfma_f32_32x32x16_bf16"; MF16 = "v_mfma_f32_16x16x32_bf16"; MF4 = "v_mfma_f32_4x4x4_16b_bf16"
SC = "sc1"

def weave(main, *fills):
    out = []; fl = [(list(f), c) for f, c in fills]
    for i, m in enumerate(main):
        out.append(m)
        for f, c in fl:
            for _ in range(c[i]):
                if f: out.append(f.pop(0))
    for f, c in fl: out += f
    return out

def row_stats_finish(a, s1, s2, tmp, mb, den):
    a(f"""
    v_mul_f32 {s1}, {fhex(1/640)}, {s1}
    v_mul_f32 {s2}, {fhex(1/640)}, {s2}
    v_fma_f32 {s2}, -{s1}, {s1}, {s2}
    v_max_f32 {s2}, 0, {s2}
    v_cvt_pk_bf16_f32 {tmp}, {s1}, {s2}
    v_lshlrev_b32 {mb}, 16, {tmp}
    v_and_b32 {s2}, 0xffff0000, {tmp}
    v_add_f32 {s2}, {fhex(1e-5)}, {s2}
    v_cvt_pk_bf16_f32 {tmp}, {s2}, {s2}
    v_and_b32 {s2}, 0xffff0000, {tmp}
    v_sqrt_f32 {s2}, {s2}
    s_nop 0
    v_cvt_pk_bf16_f32 {tmp}, {s2}, {s2}
    v_and_b32 {den}, 0xffff0000, {tmp}
    """)

def gen_k1(stamp=False, rotmode=2, code_bytes='code_end-k1_kernel', dbg='', hprio=1):
    a = Asm("K1"); ST = Stamps(a, 0, stamp)
    S = Alloc('s', 3, 72); V = Alloc('v', 1, 256)
    pX = S(2); pWr = S(4); pW1 = S(4); pW2 = S(2); pWS = S(2)
    r0 = S(4); r1 = S(4); r2 = S(4); r3 = S(4)
    sW, sQ, sHf, sRp, sRb, sU0, sU1, sUnit, sMixed, sC, sSlot, sT0, sT1, sT2, sCk, sSoA, sSoB0, sSoB1, sX = [S() for _ in range(19)]
    sMask = S(2)
    vL = V(); vN1 = V(); vH = V(); vT0 = V(); vT1 = V(); vT2 = V()
    a("s_cmp_ge_u32 s2, 256\ns_cbranch_scc1 K1_end")
    ST(0); ST.init()
    a(f"""
    s_load_dwordx2 {pX}, s[0:1], 0
    s_load_dwordx4 {pW1}, s[0:1], 32
    s_load_dwordx2 {pWS}, s[0:1], 80
    s_load_dwordx4 {pWr}, s[0:1], 8
    s_load_dwordx2 {pW2}, s[0:1], 48
    v_lshrrev_b32 {vT0}, 6, v0
    v_and_b32 {vL}, 63, v0
    v_readfirstlane_b32 {sW}, {vT0}
    v_and_b32 {vN1}, 31, v0
    v_lshrrev_b32 {vH}, 5, {vL}
    s_and_b32 {sT0}, s2, 1             ; j
    s_bfe_u32 {sRb}, s2, 0x20001       ; i
    s_lshl_b32 {sRb}, {sRb}, 2
    s_bfe_u32 {sT1}, s2, 0x20003       ; rbl
    s_add_u32 {sRb}, {sRb}, {sT1}
    s_lshr_b32 {sT2}, s2, 5            ; cb
    """)
    if rotmode == 0: a(f"s_mov_b32 {sCk}, 0")
    elif rotmode == 1:
        a(f"s_add_u32 {sCk}, {sT2}, {sT1}\ns_and_b32 {sCk}, {sCk}, 3\ns_mul_i32 {sCk}, {sCk}, 5\ns_lshr_b32 {sCk}, {sCk}, 1")
    elif rotmode == 2:
        a(f"s_add_u32 {sCk}, {sT2}, {sT1}\ns_and_b32 {sCk}, {sCk}, 1\ns_mul_i32 {sCk}, {sCk}, 5")
    elif rotmode == 3:
        a(f"s_lshl_b32 {sCk}, {sT1}, 1\ns_add_u32 {sCk}, {sCk}, {sT2}\ns_and_b32 {sCk}, {sCk}, 7\ns_mul_i32 {sCk}, {sCk}, 5\ns_lshr_b32 {sCk}, {sCk}, 2")
    elif isinstance(rotmode, tuple):
        npz, A_, B_, C_ = rotmode
        a(f"""s_add_u32 {sCk}, {sT2}, {sT1}
        s_and_b32 {sCk}, {sCk}, {npz-1}
        s_mul_i32 {sCk}, {sCk}, {A_}
        s_bfe_u32 {sC}, s2, 0x20001
        s_mul_i32 {sC}, {sC}, {B_}
        s_add_u32 {sCk}, {sCk}, {sC}
        s_mul_i32 {sC}, {sT0}, {C_}
        s_add_u32 {sCk}, {sCk}, {sC}
        s_lshr_b32 {sCk}, {sCk}, 2
        s_mul_i32 {sC}, {sCk}, 26
        s_lshr_b32 {sC}, {sC}, 8
        s_mul_i32 {sC}, {sC}, 10
        s_sub_u32 {sCk}, {sCk}, {sC}""")
    elif rotmode == 4:
        a(f"s_add_u32 {sCk}, {sT2}, {sT1}\ns_mul_i32 {sC}, {sCk}, 86\ns_lshr_b32 {sC}, {sC}, 8\ns_mul_i32 {sC}, {sC}, 3\ns_sub_u32 {sCk}, {sCk}, {sC}\ns_mul_i32 {sCk}, {sCk}, 7\ns_lshr_b32 {sCk}, {sCk}, 1")
    a(f"""
    s_mul_i32 {sU0}, {sT0}, 14
    s_sub_u32 {sC}, 6, {sT0}
    s_cmp_ge_u32 {sT2}, {sC}
    s_cselect_b32 {sMixed}, 1, 0
    s_cselect_b32 {sT1}, {sC}, {sT2}
    s_add_u32 {sU0}, {sU0}, {sT2}
    s_add_u32 {sU0}, {sU0}, {sT1}
    s_add_u32 {sU1}, {sU0}, 1
    s_lshl_b32 {sT0}, {sT0}, 1
    s_add_u32 {sT0}, {sT0}, {sT2}
    s_sub_u32 {sT0}, {sT0}, {sC}
    s_cmp_eq_u32 {sMixed}, 1
    s_cselect_b32 {sU1}, {sT0}, {sU1}
    s_and_b32 {sQ}, {sW}, 3
    s_cmp_lt_u32 {sW}, 4
    s_cbranch_scc1 K1_comp
    """)
    mark = V.mark()
    vOffA = V(4); vOffB = V(); vU = V(4); vZ = V(4); sMsk = S(); sMA = S(); sMB = S()
    c0 = -2 * math.sqrt(2 / math.pi) * math.log2(math.e); c1 = c0 * 0.044715
    if hprio: a(f"s_setprio {hprio}")
    a(f"""
    v_lshrrev_b32 {vT0}, 3, {vL}
    s_mov_b32 {sT1}, {64*1280}
    v_mul_lo_u32 {vT0}, {vT0}, {sT1}
    v_lshrrev_b32 {vT1}, 4, {vL}
    v_and_b32 {vT2}, 7, {vL}
    v_xor_b32 {vT1}, {vT1}, {vT2}
    v_lshl_add_u32 {vOffA[0]}, {vT1}, 4, {vT0}
    v_xor_b32 {vT0}, 64, {vOffA[0]}
    v_add_u32 {vOffA[1]}, {8*64*1280 - 1024}, {vT0}
    v_add_u32 {vOffA[2]}, {16*64*1280 - 2048}, {vOffA[0]}
    v_add_u32 {vOffA[3]}, {24*64*1280 - 3072}, {vT0}
    s_lshl_b32 {sT0}, {sRb}, 2
    s_add_u32 {sT0}, {sT0}, {sQ}
    s_mul_i32 {sSoA}, {sT0}, 1280
    v_lshrrev_b32 {vT0}, 3, {vL}
    v_mul_u32_u24 {vT0}, 3456, {vT0}
    v_lshrrev_b32 {vT1}, 2, {vL}
    v_and_b32 {vT1}, 4, {vT1}
    v_xor_b32 {vT1}, {vT1}, {vT2}
    v_lshl_add_u32 {vOffB}, {vT1}, 4, {vT0}
    s_mul_i32 {sT0}, {sQ}, {16*3456}
    s_lshl_b32 {sSoB0}, {sU0}, 7
    s_add_u32 {sSoB0}, {sSoB0}, {sT0}
    s_mov_b32 {sSlot}, 0
    s_mov_b32 {sX}, {sCk}
    s_waitcnt lgkmcnt(0)
    """)
    ST(1)
    a.srd(r0, pX[0], pX[1], X_BYTES)
    a.srd(r1, pW1[0], pW1[1], W1_BYTES)
    a.srd(r2, pW1[2], pW1[3], 1728*2)
    a(f"""
    s_lshl_b32 {sMA}, {sQ}, 12
    s_lshl_b32 {sMB}, {sQ}, 11
    s_add_u32 {sMB}, {sMB}, 16384
    s_lshl_b32 {sT0}, {sCk}, 7
    s_add_u32 {sSoA}, {sSoA}, {sT0}
    s_mul_i32 {sT0}, {sCk}, {64*3456}
    s_add_u32 {sSoB0}, {sSoB0}, {sT0}
    """)
    def issue(mixed):
        g = [[f"s_add_u32 m0, {sMA}, {sSlot}", f"s_add_u32 {sT1}, {sSoB0}, {8*3456 - 1024}"], [], [], []]
        for i in range(4): g[i].append(f"buffer_load_dwordx4 {vOffA[i]}, {r0}, {sSoA} offen offset:{1024*i} lds")
        g.append([f"s_add_u32 m0, {sMB}, {sSlot}", f"s_add_u32 {sCk}, {sCk}, 1", f"buffer_load_dwordx4 {vOffB}, {r1}, {sSoB0} offen lds"])
        g.append([f"buffer_load_dwordx4 {vOffB}, {r1}, {sT1} offen offset:1024 lds"])
        if not mixed:
            g.append([f"s_add_u32 m0, m0, {8192 - 128}", "s_nop 0", f"buffer_load_dwordx4 {vOffB}, {r1}, {sSoB0} offen offset:128 lds"])
            g.append([f"buffer_load_dwordx4 {vOffB}, {r1}, {sT1} offen offset:{1024+128} lds"])
        return g
    def advance():
        a(f"""
        s_cmp_eq_u32 {sCk}, 10
        s_cselect_b32 {sT0}, -9, 1
        s_lshl_b32 {sT1}, {sT0}, 7
        s_add_u32 {sSoA}, {sSoA}, {sT1}
        s_mul_i32 {sT0}, {sT0}, {64*3456}
        s_add_u32 {sSoB0}, {sSoB0}, {sT0}
        s_add_u32 {sSlot}, {sSlot}, 0x8000
        s_and_b32 {sSlot}, {sSlot}, 0x1ffff
        """)
    def hiter(mixed, fstep, b):
        n = 6 if mixed else 8
        a(f"s_waitcnt vmcnt({n}) lgkmcnt(0)\ns_barrier")
        v = fstep or []
        per = -(-len(v) // n)
        for i, g in enumerate(issue(mixed)):
            for l in g + v[per*i:per*(i+1)]: a(l)
        advance()
    def hinit(): a(f"s_mov_b32 {sC}, 0")
    a(f"""
    s_mov_b32 m0, {B1_OFF}
    s_lshl_b32 {sT0}, {sU0}, 7
    v_lshl_add_u32 {vT0}, {vL}, 2, {sT0}
    buffer_load_dword {vT0}, {r2}, 0 offen lds
    """)
    a(f"s_cmp_eq_u32 {sMixed}, 1\ns_cbranch_scc1 K1_hmix")
    for c in range(2):
        for g in issue(False):
            for l in g: a(l)
        advance()
    if stamp and 'T' in dbg:
        ST(4); a("s_waitcnt vmcnt(15)"); ST(5); a("s_waitcnt vmcnt(8)"); ST(6); a("s_waitcnt vmcnt(0)"); ST(7)
    hinit()
    a("K1_hploop:")
    hiter(False, None, 0)
    a(f"s_add_u32 {sC}, {sC}, 1\ns_cmp_lt_u32 {sC}, 8\ns_cbranch_scc1 K1_hploop\ns_branch K1_htail\nK1_hmix:")
    vFw = V(); vStepC = V(); vStepS = V(); vPhS = V(); vD0 = V(); vBc = V(); vBs = V(); vFa = V(); fs = [V(16), V(16)]; fo = V(8); vKc = V(); vKs = V()
    for c in range(2):
        for g in issue(True):
            for l in g: a(l)
        advance()
    a(f"""
    s_lshl_b32 {sT0}, {sU1}, 5
    v_add_u32 {vT0}, {sT0}, {vN1}
    v_cmp_eq_u32 {sMask}, 0, {vT0}
    v_cvt_f32_u32 {vStepC}, {vT0}
    v_mul_f32 {vStepC}, {fhex(1/640)}, {vStepC}
    v_mov_b32 {vT1}, {fhex(0.25)}
    v_cndmask_b32 {vStepS}, {vStepC}, {vT1}, {sMask}
    s_and_b32 {sT1}, {sQ}, 1
    s_cmp_eq_u32 {sT1}, 0
    s_cselect_b32 {sT2}, {fhex(0.25)}, 0
    v_mov_b32 {vT1}, {sT2}
    v_cndmask_b32 {vPhS}, 0, {vT1}, {sMask}
    s_lshr_b32 {sT2}, {sQ}, 1
    s_lshl_b32 {sT2}, {sT2}, 5
    s_add_u32 {sT2}, {sT2}, {sT1}
    s_lshl_b32 {sT1}, {sX}, 6
    s_add_u32 {sT2}, {sT2}, {sT1}
    v_lshl_add_u32 {vD0}, {vH}, 3, {sT2}
    s_lshl_b32 {sT0}, {sQ}, 11
    s_add_u32 {sT0}, {sT0}, {16384+8192}
    v_lshl_add_u32 {vFw}, {vL}, 4, {sT0}
    v_cvt_f32_u32 {vT0}, {vD0}
    v_mul_f32 {vBc}, {vT0}, {vStepC}
    v_fma_f32 {vBs}, {vT0}, {vStepS}, {vPhS}
    v_mul_f32 {vKc}, {fhex(64.0)}, {vStepC}
    v_cos_f32 {vKc}, {vKc}
    s_nop 0
    v_add_f32 {vKc}, {vKc}, {vKc}
    """)
    def fout(f, addr, off=0):
        return [f"v_cvt_pk_bf16_f32 {fo[j]}, {f[2*j]}, {f[2*j+1]}" for j in range(8)] + [f"ds_write_b128 {addr}, {fo[0:4]} offset:{off}", f"ds_write_b128 {addr}, {fo[4:8]} offset:{off+1024}"]
    for c in range(2):
        for j, o in enumerate([0, 2, 4, 6, 16, 18, 20, 22]):
            o += 64 * c; f = fs[c]
            if o == 0: a(f"v_cos_f32 {f[0]}, {vBc}\nv_sin_f32 {f[8]}, {vBs}")
            else: a(f"v_fmamk_f32 {f[j]}, {vStepC}, {fhex(o)}, {vBc}\nv_fmamk_f32 {f[8+j]}, {vStepS}, {fhex(o)}, {vBs}\nv_cos_f32 {f[j]}, {f[j]}\nv_sin_f32 {f[8+j]}, {f[8+j]}")
        for l in fout(fs[c], vFw, 32768*c): a(l)
    hinit()
    a("K1_hmloop:")
    for k in range(2):
        hiter(True, [f"v_add_u32 {vFa}, {sSlot}, {vFw}"] + [f"v_fma_f32 {fs[k][j]}, {vKc}, {fs[1-k][j]}, -{fs[k][j]}" for j in range(16)] + fout(fs[k], vFa), k)
    a(f"s_add_u32 {sC}, {sC}, 1\ns_cmp_lt_u32 {sC}, 4\ns_cbranch_scc1 K1_hmloop")
    a(f"v_mov_b32 {vT0}, 0x7f000000\nbuffer_load_dword {vBc}, {vT0}, {r0}, 0 offen\nbuffer_load_dword {vBs}, {vT0}, {r0}, 0 offen")
    a("K1_htail:")
    ST(2)
    cp = V(12); wa = V(6); wb = V(6); wo = V(12); vI = V(3); sWv = S(); sP = S()
    a.srd(r2, pW2[0], pW2[1], W2_BYTES)
    a.srd(r3, pWr[0], pWr[1], W_BYTES)
    a.srd(r1, pWr[2], pWr[3], W_BYTES)
    a(f"s_lshl_b32 {sWv}, s2, 2\ns_add_u32 {sWv}, {sWv}, {sQ}\ns_mul_i32 {sT2}, {sWv}, {2*642}")
    for i in range(3):
        a(f"""
        v_add_u32 {vT0}, {64*i}, {vL}
        v_cmp_le_u32 vcc, 88, {vT0}
        v_lshlrev_b32 {vI[i]}, 4, {vT0}
        v_subrev_u32 {vT1}, 88, {vT0}
        v_cndmask_b32 {vT1}, {vT0}, {vT1}, vcc
        v_lshlrev_b32 {vT0}, 3, {vT0}
        v_subrev_u32 {vT2}, {88*8 - 642}, {vT0}
        v_cndmask_b32 {vT0}, {vT0}, {vT2}, vcc
        v_cmp_le_u32 vcc, 48, {vT1}
        v_subrev_u32 {vT2}, 62, {vT0}
        s_nop 0
        v_cndmask_b32 {vT0}, {vT0}, {vT2}, vcc
        buffer_load_dwordx2 {wa[2*i:2*i+2]}, {vT0}, {r3}, {sT2} offen
        buffer_load_dwordx2 {wb[2*i:2*i+2]}, {vT0}, {r1}, {sT2} offen
        """)
    for i in range(3):
        a(f"""
        s_add_u32 {sP}, {sWv}, {1024*i}
        s_mul_i32 {sT0}, {sP}, 7768
        s_lshr_b32 {sT0}, {sT0}, 21
        s_mul_i32 {sT1}, {sT0}, 270
        s_sub_u32 {sT1}, {sP}, {sT1}
        s_lshl_b32 {sT1}, {sT1}, 6
        v_add_u32 {vT0}, {sT1}, {vL}
        v_mul_u32_u24 {vT1}, 52429, {vT0}
        v_lshrrev_b32 {vT1}, 19, {vT1}
        v_mul_u32_u24 {vT1}, {1280-160}, {vT1}
        v_lshl_add_u32 {vT1}, {vT0}, 4, {vT1}
        s_mul_i32 {sT0}, {sT0}, 160
        s_cmp_ge_u32 {sP}, 2160
        s_cselect_b32 {r2[2]}, 0, {r2[2]}
        s_cselect_b32 {sT0}, 0, {sT0}
        buffer_load_dwordx4 {cp[4*i:4*i+4]}, {vT1}, {r2}, {sT0} offen
        """)
    a("s_waitcnt vmcnt(17) lgkmcnt(0)\ns_barrier\ns_waitcnt vmcnt(9)\ns_barrier")
    ST(3)
    a.srd_off(r2, pWS, WS_W2T, W2T_BYTES)
    a.srd_off(r3, pWS, WS_WP, WP_BYTES)
    a.srd_off(r0, pWS, WS_FL, FL_BYTES)
    a(f"""
    v_mov_b32 {vU[0]}, 0x05040100
    v_mov_b32 {vU[1]}, 0x07060302
    v_cmp_gt_u32 vcc, 48, {vL}
    v_mov_b32 {vT0}, 0x7f000000
    s_mul_i32 {sT0}, {sWv}, {2*1408}
    v_cndmask_b32 {vI[2]}, {vT0}, {vI[2]}, vcc
    s_barrier
    s_waitcnt vmcnt(3)
    """)
    for i in range(3):
        for k in range(4): a(f"v_perm_b32 {wo[4*i+k]}, {wb[2*i+k//2]}, {wa[2*i+k//2]}, {vU[k%2]}")
        a(f"buffer_store_dwordx4 {wo[4*i:4*i+4]}, {vI[i]}, {r3}, {sT0} offen {SC}")
    a(f"s_lshl_b32 {sT0}, {sWv}, 10\nv_add_u32 {vT1}, {sT0}, {vI[0]}\ns_waitcnt vmcnt(3)")
    for i in range(3):
        a(f"buffer_store_dwordx4 {cp[4*i:4*i+4]}, {vT1}, {r2}, 0 offen {SC}")
        if i < 2: a(f"v_add_u32 {vT1}, {1024*1024}, {vT1}")
    for k in range(4): a(f"v_mov_b32 {vZ[k]}, 0")
    a(f"v_add_u32 {vT0}, {sT0}, {vI[0]}\nbuffer_store_dwordx4 {vZ}, {vT0}, {r0}, 0 offen {SC}")
    if 'T' not in dbg: ST(4)
    ST.flush(pWS, sW)
    a("s_endpgm")
    hi = V.hi
    V.release(mark)
    vXs = [V(4), V(4)]; vPf = V(2); vS1 = V(4); vS2 = V(2); vSel = V(4); vU = V(4); vRs = V(); sMk2 = S(2)
    a(f"""
    K1_comp:
    s_getpc_b64 {r3[0:2]}
    K1_pc:
    s_sub_u32 {r3[0]}, {r3[0]}, K1_pc-k1_kernel
    s_subb_u32 {r3[1]}, {r3[1]}, 0
    s_mov_b32 {r3[2]}, {code_bytes}
    s_mov_b32 {r3[3]}, 0x20000
    v_lshlrev_b32 {vT0}, 7, v0
    s_mov_b32 {sT0}, 0x8000
    buffer_load_dword {vPf[0]}, {vT0}, {r3}, 0 offen
    v_add_u32 {vT1}, {sT0}, {vT0}
    buffer_load_dword {vPf[1]}, {vT1}, {r3}, 0 offen
    s_and_b32 {sRp}, {sW}, 1
    s_lshr_b32 {sHf}, {sW}, 1
    s_cmp_eq_u32 {sHf}, 0
    s_cselect_b32 {sUnit}, {sU0}, {sU1}
    v_lshrrev_b32 {vT0}, 1, {vN1}
    v_and_b32 {vT0}, 7, {vT0}
    v_xor_b32 {vT0}, {vT0}, {vH}
    v_lshlrev_b32 {vT0}, 4, {vT0}
    v_lshl_add_u32 {vT0}, {vN1}, 7, {vT0}
    s_lshl_b32 {sT0}, {sRp}, 13
    s_lshl_b32 {sT1}, {sHf}, 12
    s_add_u32 {sT0}, {sT0}, {sT1}
    v_add_u32 {vXs[0][0]}, {sT0}, {vT0}
    s_lshr_b32 {sT0}, {sT0}, 2
    s_add_u32 {sT0}, {sT0}, {RS_OFF}
    v_lshl_add_u32 {vRs}, {vL}, 4, {sT0}
    v_and_b32 {vT0}, 16, {vL}
    v_cmp_eq_u32 {sMk2}, 0, {vT0}
    v_lshrrev_b32 {vT0}, 4, {vL}
    v_xor_b32 {vT0}, {vT0}, {vL}
    v_and_b32 {vT0}, 1, {vT0}
    v_cmp_eq_u32 vcc, 0, {vT0}
    v_mov_b32 {vT1}, 0x3f803f80
    s_mov_b32 {sMsk}, 0xffff0000
    v_mov_b32 {vS2[0]}, 0
    v_mov_b32 {vS2[1]}, 0
    """)
    for k in range(4): a(f"v_cndmask_b32 {vSel[k]}, 0, {vT1}, vcc")
    for k in range(1, 4): a(f"v_xor_b32 {vXs[0][k]}, {32*k}, {vXs[0][0]}")
    for k in range(4): a(f"v_add_u32 {vXs[1][k]}, 0x10000, {vXs[0][k]}")
    def sumsq(buf):
        o = []
        for ks in range(2):
            for i in range(0, 4, 2):
                x = buf[ks][0]
                o += [f"v_lshlrev_b32 {vU[0]}, 16, {x[i]}", f"v_and_b32 {vU[1]}, {sMsk}, {x[i]}", f"v_lshlrev_b32 {vU[2]}, 16, {x[i+1]}", f"v_and_b32 {vU[3]}, {sMsk}, {x[i+1]}",
                      f"v_fmac_f32 {vS2[0]}, {vU[0]}, {vU[0]}", f"v_fmac_f32 {vS2[1]}, {vU[1]}, {vU[1]}", f"v_fmac_f32 {vS2[0]}, {vU[2]}, {vU[2]}", f"v_fmac_f32 {vS2[1]}, {vU[3]}, {vU[3]}"]
        return o
    def stats_own(pub, gram=False):
        b = Asm()
        if gram:
            b(f"""
            v_bfi_b32 {vU[0]}, {vS2[0]}, {vU[1]}, {vU[0]}
            v_bfi_b32 {vU[2]}, {vS2[0]}, {vU[3]}, {vU[2]}
            v_bfi_b32 {vS2[0]}, {vS2[1]}, {vU[2]}, {vU[0]}
            """)
        else: b(f"v_add_f32 {vS2[0]}, {vS2[0]}, {vS2[1]}")
        b(f"""
        v_cndmask_b32 {vS1[0]}, {vS1[1]}, {vS1[0]}, {sMk2}
        v_mov_b32 {vS2[1]}, {vS2[0]}
        s_nop 1
        v_permlane32_swap_b32 {vS2[0]}, {vS2[1]}
        s_nop 0
        v_add_f32 {vS2[0]}, {vS2[0]}, {vS2[1]}
        """)
        row_stats_finish(b, vS1[0], vS2[0], vT0, vU[0], pub[1])
        b(f"""
        v_rcp_f32 {vT2}, {pub[1]}
        v_lshrrev_b32 {vT0}, 16, {vU[0]}
        v_or_b32 {vT0}, {vT0}, {vU[0]}
        v_cndmask_b32 {pub[0]}, 0, {vT0}, vcc
        v_mul_f32 {pub[2]}, {fhex(c0)}, {vT2}
        v_mul_f32 {vT0}, {vT2}, {vT2}
        v_mul_f32 {vT0}, {vT0}, {vT2}
        v_mul_f32 {pub[3]}, {fhex(c1)}, {vT0}
        ds_write_b128 {vRs}, {pub}
        v_xor_b32 {vRs}, 1024, {vRs}
        """)
        return [l.strip() for l in b.lines]
    a(f"s_and_b32 {sT0}, {sMixed}, {sHf}\ns_cbranch_scc1 K1_dft")
    def xreads(buf, c, hh, vXo=None):
        if vXo: return [f"ds_read_b128 {buf[ks][g]}, {(vXo if g else vXs)[(c%4)//2][2*hh+ks]} offset:{32768*(c%2)}" for ks in range(2) for g in range(2)]
        return [f"ds_read_b128 {buf[ks][g]}, {vXs[(c%4)//2][2*hh+ks]} offset:{32768*(c%2) + 4096*(1-g)}" for ks in range(2) for g in range(2)]
    mark = V.mark()
    vWs = [V(2), V(2)]; vCs = V(4); vXo = [V(4), V(4)]
    for k in range(8): a(f"v_xor_b32 {vXo[k//4][k%4]}, 4096, {vXs[k//4][k%4]}")
    acc = [[V(16) for g in range(2)] for t in range(2)]
    bX = [V(16), V(16)]; bW = [V(16), V(16)]
    bufX = [[[bX[b][8*ks+4*g:8*ks+4*g+4] for g in range(2)] for ks in range(2)] for b in range(2)]
    bufW = [[[bW[b][8*ks+4*t:8*ks+4*t+4] for t in range(2)] for ks in range(2)] for b in range(2)]
    aug = V(16); augX = [aug[0:4], aug[4:8]]; augW = [aug[8:12], aug[12:16]]
    vCa = V(); vOffH = V(); sH = [[S(), S()], [S(), S()]]
    a(f"""
    v_and_b32 {vT0}, 15, {vL}
    v_lshrrev_b32 {vT1}, 2, {vT0}
    v_lshl_add_u32 {vT1}, {vH}, 3, {vT1}
    v_lshlrev_b32 {vT2}, 7, {vT1}
    v_and_b32 {vT1}, 8, {vT0}
    v_lshl_add_u32 {vT2}, {vT1}, 3, {vT2}
    v_and_b32 {vT1}, 16, {vL}
    v_lshl_add_u32 {vT2}, {vT1}, 1, {vT2}
    v_and_b32 {vT1}, 3, {vL}
    v_lshl_add_u32 {vT2}, {vT1}, 3, {vT2}
    s_lshl_b32 {sT0}, {sHf}, 13
    s_add_u32 {sT0}, {sT0}, 16384
    v_add_u32 {vT2}, {sT0}, {vT2}
    s_lshl_b32 {sT1}, {sRp}, 6
    v_xor_b32 {vWs[0][0]}, {sT1}, {vT2}
    v_xor_b32 {vWs[0][1]}, 64, {vWs[0][0]}
    v_add_u32 {vWs[1][0]}, 0x10000, {vWs[0][0]}
    v_add_u32 {vWs[1][1]}, 0x10000, {vWs[0][1]}
    v_lshlrev_b32 {vOffH}, 4, {vT0}
    v_lshl_add_u32 {vOffH}, {vH}, 8, {vOffH}
    v_and_b32 {vT0}, 16, {vL}
    v_lshl_add_u32 {vOffH}, {vT0}, 6, {vOffH}
    s_lshl_b32 {sT0}, {sW}, 7
    s_add_u32 {sT0}, {sT0}, {CS_OFF}
    v_lshl_add_u32 {vCa}, {vN1}, 2, {sT0}
    """)
    for i in (2, 3, 6, 7, 10, 11, 14, 15): a(f"v_mov_b32 {aug[i]}, 0")
    a(f"""
    v_cmp_eq_u32 vcc, 0, {vH}
    s_lshl_b32 {sT0}, {sRb}, 1
    s_add_u32 {sT0}, {sT0}, {sRp}
    s_mul_i32 {sT0}, {sT0}, 108
    s_lshl_b32 {sT2}, {sUnit}, 1
    s_add_u32 {sT0}, {sT0}, {sT2}
    s_add_u32 {sT0}, {sT0}, {sRp}
    s_lshl_b32 {sT0}, {sT0}, 11
    s_add_u32 {sT2}, {sT0}, {54*2048}
    s_cmp_eq_u32 {sHf}, 0
    s_cselect_b32 {sH[0][0]}, {sT0}, {sT2}
    s_cselect_b32 {sH[0][1]}, {sT2}, {sT0}
    s_xor_b32 {sH[1][0]}, {sH[0][0]}, 2048
    s_xor_b32 {sH[1][1]}, {sH[0][1]}, 2048
    s_waitcnt lgkmcnt(0)
    """)
    a.srd_off(r2, pWS, WS_H, H_BYTES)
    a(f"""
    s_lshl_b32 {sT0}, {sW}, 6
    s_add_u32 {sT0}, {sT0}, {B1_OFF}
    v_lshl_add_u32 {augW[0][1]}, {vN1}, 1, {sT0}
    v_xor_b32 {augW[1][1]}, 64, {augW[0][1]}
    """)
    ST(1)
    def mreads(b, c, hh):
        o = xreads(bufX[b], c, hh, vXo)
        w = [f"ds_read_b64_tr_b16 {bufW[b][ks][t][2*e:2*e+2]}, {vWs[(c%4)//2][t]} offset:{32768*(c%2) + 4096*hh + 2048*ks + 512*e}" for ks in range(2) for t in range(2) for e in range(2)]
        return o[0:2] + w[0:4] + o[2:4] + w[4:8]
    def mmain(b, first=False):
        o = []
        for ks in range(2):
            z = first and ks == 0
            mm = [f"{MF32} {acc[t][g]}, {bufW[b][ks][t]}, {bufX[b][ks][g]}, {0 if z else acc[t][g]}" for t in range(2) for g in range(2)]
            o += [f"{MF16} {vCs}, {vSel}, {bufW[b][ks][0]}, {0 if z else vCs}", f"{MF16} {vS1}, {vSel}, {bufX[b][ks][0]}, {0 if z else vS1}"] + mm
        return o
    RD = [1, 1, 2, 2, 2, 2, 0, 0, 2, 0, 0, 0]; SQ = [0, 0, 2, 4, 2, 4, 2, 2, 4, 4, 4, 4]
    a(".p2align 3\nK1_mloop:")
    for c in range(10):
        a("s_waitcnt lgkmcnt(0)\ns_barrier")
        if c == 0:
            ST(2)
            for t in range(2): a(f"ds_read_u16 {augW[t][1]}, {augW[t][1]}")
        for l in (weave(mmain(1), (mreads(0, c, 0), RD), (sumsq(bufX[1]), SQ)) if c else mreads(0, c, 0)): a(l)
        a("s_waitcnt lgkmcnt(0)\ns_nop 0")
        for l in weave(mmain(0, c == 0), (mreads(1, c, 1), RD), (sumsq(bufX[0]), SQ)): a(l)
    a("K1_mloope:\ns_waitcnt lgkmcnt(0)")
    ST(3)
    rs = [bX[0][0:4], bX[0][4:8]]
    m = mmain(1); m = m[0:2] + m[6:8] + m[2:6] + m[8:12]
    cs = [f"v_cndmask_b32 {vCs[0]}, {vCs[1]}, {vCs[0]}, {sMk2}", f"v_cvt_pk_bf16_f32 {vT0}, -{vCs[0]}, -{vCs[0]}", f"v_and_b32 {vT1}, 0xffff0000, {vT0}",
          f"v_sub_f32 {vT1}, -{vCs[0]}, {vT1}", f"v_cvt_pk_bf16_f32 {augW[0][0]}, -{vCs[0]}, {vT1}", f"ds_write_b32 {vCa}, {augW[0][0]}", f"v_xor_b32 {vCa}, 128, {vCa}"]
    for l in weave(m, (sumsq(bufX[1]) + cs + stats_own(rs[0]), [2, 2, 2, 2, 7, 7, 7, 7, 7, 7, 7, 7])): a(l)
    a(f"""
    s_waitcnt lgkmcnt(0)
    s_barrier
    ds_read_b128 {rs[1]}, {vRs}
    ds_read_b32 {augW[1][0]}, {vCa}
    """)
    for g in range(2):
        a(f"""
        s_waitcnt lgkmcnt({2 - 2*g})
        v_lshrrev_b32 {vT1}, 16, {rs[g][1]}
        v_mov_b32 {augX[g][0]}, {rs[g][0]}
        v_cndmask_b32 {augX[g][1]}, 0, {vT1}, vcc
        s_nop 1
        {MF32} {acc[0][g]}, {augW[0]}, {augX[g]}, {acc[0][g]}
        """)
    for g in range(2): a(f"{MF32} {acc[1][g]}, {augW[1]}, {augX[g]}, {acc[1][g]}")
    a("s_nop 3")
    gq = [bW[1][2*i:2*i+2] for i in range(8)]
    ST(4)
    a(".p2align 3")
    for t in range(2):
        for g in range(2):
            P = [acc[t][g][2*i:2*i+2] for i in range(8)]
            for i in range(8): a(f"v_pk_mul_f32 {gq[i]}, {P[i]}, {P[i]}")
            for i in range(8): a(f"v_pk_fma_f32 {gq[i]}, {gq[i]}, {rs[g][2:4]}, {rs[g][2:4]} op_sel:[0,1,0] op_sel_hi:[1,1,0]")
            for i in range(8): a(f"v_pk_mul_f32 {gq[i]}, {gq[i]}, {P[i]}")
            for i in range(8): a(f"v_exp_f32 {gq[i][0]}, {gq[i][0]}\nv_exp_f32 {gq[i][1]}, {gq[i][1]}")
            for i in range(8): a(f"v_pk_fma_f32 {gq[i]}, {gq[i]}, {rs[g][0:2]}, {rs[g][0:2]} op_sel:[0,1,1]")
            for i in range(8): a(f"v_rcp_f32 {gq[i][0]}, {gq[i][0]}\nv_rcp_f32 {gq[i][1]}, {gq[i][1]}")
            for i in range(8): a(f"v_pk_mul_f32 {gq[i]}, {gq[i]}, {P[i]}")
            for i in range(8): a(f"v_cvt_pk_bf16_f32 {acc[t][g][i]}, {gq[i][0]}, {gq[i][1]}")
            for e in range(2): a(f"buffer_store_dwordx4 {acc[t][g][4*e:4*e+4]}, {vOffH}, {r2}, {sH[t][g]} offen offset:{512*e} {SC}")
    ST(5); ST.flush(pWS, sW)
    a("s_endpgm")
    hi = max(hi, V.hi)
    V.release(mark)
    acc = [[V(16) for k in range(4)] for g in range(2)]
    bX = [V(16), V(16)]; bF = [V(16), V(16)]; pm = V(16)
    bufX = [[[bX[b][8*ks+4*g:8*ks+4*g+4] for g in range(2)] for ks in range(2)] for b in range(2)]
    vFs = V(2); vSelE = sH[0][0]; vSelO = sH[0][1]; vRot = V(4); vRt = V(); vMu = V(2); sN2 = sH[1][0]; vO1 = vXs[0][0]; vO2 = vXs[0][1]; vO3 = vXs[0][2]; vRd = vXs[0][3]; vRw = vXs[1][0]
    vStepR = pm[0]; vBaseR = pm[1]
    a(f"""
    K1_dft:
    s_mov_b32 {vSelE}, 0x05040100
    s_mov_b32 {vSelO}, 0x07060302
    v_lshlrev_b32 {vT2}, 4, {vL}
    s_lshl_b32 {sT0}, {sRp}, 13
    s_add_u32 {sT0}, {sT0}, {RTAB_OFF}
    v_add_u32 {vRt}, {sT0}, {vT2}
    v_add_u32 {vFs[0]}, {16384+8192}, {vT2}
    v_add_u32 {vFs[1]}, {65536+16384+8192}, {vT2}
    s_lshl_b32 {sT0}, {sUnit}, 5
    v_add_u32 {vT0}, {sT0}, {vN1}
    v_cmp_eq_u32 {sMask}, 0, {vT0}
    s_lshl_b32 {sN2}, {sRb}, 2
    s_lshl_b32 {sT2}, {sRp}, 1
    s_add_u32 {sN2}, {sN2}, {sT2}
    v_cndmask_b32 {vMu[0]}, 1.0, 0, {sMask}
    v_cndmask_b32 {vMu[1]}, 1.0, 0, {sMask}
    """)
    for k in range(8): a(f"v_xor_b32 {vXs[k//4][k%4]}, 4096, {vXs[k//4][k%4]}")
    a(f"v_bfe_i32 {vS2[0]}, {vL}, 0, 1\nv_bfe_i32 {vS2[1]}, {vL}, 1, 1")
    for g in range(2):
        Rv = bF[g]
        a(f"""
        v_lshrrev_b32 {vT1}, 1, {vN1}
        v_cvt_f32_u32 {vT1}, {vT1}
        v_mul_f32 {vStepR}, {fhex(1/32)}, {vT1}
        s_add_u32 {sT2}, {sN2}, {1-g}
        v_cvt_f32_u32 {vT2}, {sT2}
        v_mul_f32 {vBaseR}, {vT2}, {vT1}
        v_mul_f32 {vBaseR}, {fhex(1/2048)}, {vBaseR}
        v_and_b32 {vT1}, 1, {vN1}
        v_cvt_f32_u32 {vT1}, {vT1}
        v_fmac_f32 {vBaseR}, {fhex(-0.25)}, {vT1}
        v_cmp_eq_u32 vcc, 1, {vN1}
        v_cvt_f32_u32 {vT1}, {vH}
        v_mul_f32 {vT1}, 4.0, {vT1}
        v_cndmask_b32 {vStepR}, {vStepR}, 0.5, vcc
        v_cndmask_b32 {vBaseR}, {vBaseR}, 0, vcc
        v_fmac_f32 {vBaseR}, {vT1}, {vStepR}
        v_cmp_eq_u32 vcc, 0, {vH}
        v_mul_f32 {vT2}, {fhex(1/128)}, {vT2}
        s_nop 0
        v_cndmask_b32 {vT2}, 0, {vT2}, vcc
        v_cos_f32 {vRot[2*g]}, {vT2}
        v_sin_f32 {vRot[2*g+1]}, {vT2}
        """)
        for i in range(16):
            n1 = (i % 4) + 8 * (i // 4)
            if n1 == 0: a(f"v_cos_f32 {Rv[0]}, {vBaseR}")
            else: a(f"v_fmamk_f32 {Rv[i]}, {vStepR}, {fhex(n1)}, {vBaseR}\nv_cos_f32 {Rv[i]}, {Rv[i]}")
        for i in range(4): a(f"ds_write_b128 {vRt}, {Rv[4*i:4*i+4]} offset:{4096*g + 1024*i}")
    a("s_waitcnt lgkmcnt(0)")
    a.srd_off(r2, pWS, WS_V, V_BYTES)
    a(f"s_lshr_b32 {sT1}, {sN2}, 1\ns_mul_i32 {sT1}, {sT1}, {V_ROW}")
    ST(1)
    def dhalf(b, reads, first=False, last=None):
        perm = lambda g, par: [f"v_perm_b32 {pm[8*g+4*par+i]}, {bufX[b][i//2][g][2*(i%2)+1]}, {bufX[b][i//2][g][2*(i%2)]}, {vSelO if par else vSelE}" for i in range(4)]
        g4 = [f"{MF4} {vU}, {bufX[b][i//2][0][2*(i%2):2*(i%2)+2]}, {bufX[b][i//2][0][2*(i%2):2*(i%2)+2]}, {0 if first and i == 0 else vU}" for i in range(4)]
        mm = g4 + [f"{MF16} {vS1}, {vSel}, {bufX[b][ks][0]}, {0 if first and ks == 0 else vS1}" for ks in range(2)]
        mm += [f"{MF32} {acc[g][k]}, {pm[8*g+4*(k//2):8*g+4*(k//2)+4]}, {bF[b][4*k:4*k+4]}, {0 if first else acc[g][k]}" for g in range(2) for k in range(4)]
        pr = perm(0, 0) + perm(0, 1) + perm(1, 0) + perm(1, 1)
        for l in weave(mm, (pr, [2, 2, 2, 0, 1, 1, 3, 3, 2, 0, 0, 0, 0, 0]), (reads, [0]*6 + [2, 2, 2, 2, 0, 0, 0, 0]), (last or [], [0]*8 + [3, 6, 6, 6, 6, 6])): a(l)
    def dreads(b, c, hh): return xreads(bufX[b], c, hh) + [f"ds_read_b128 {bF[b][4*i:4*i+4]}, {vFs[(c%4)//2]} offset:{32768*(c%2) + 4096*hh + 1024*i}" for i in range(4)]
    a(".p2align 3\nK1_dloop:")
    for c in range(10):
        a("s_waitcnt lgkmcnt(0)\ns_barrier")
        if c == 0:
            ST(2)
            for l in dreads(0, c, 0): a(l)
        else: dhalf(1, dreads(0, c, 0))
        a("s_waitcnt lgkmcnt(0)\ns_nop 0")
        dhalf(0, dreads(1, c, 1), c == 0)
    a("K1_dloope:\ns_waitcnt lgkmcnt(0)")
    ST(3)
    Rv = [bF[0], bF[1]]; rs = bX[1]; augX = [bX[0][0:4], bX[0][4:8]]; augF = bX[0][8:12]
    dhalf(1, [f"ds_read_b128 {bF[0][4*i:4*i+4]}, {vRt} offset:{1024*i}" for i in range(4)], last=stats_own(augX[0], True))
    a(f"""
    s_lshl_b32 {sT0}, {sRp}, 8
    s_add_u32 {sT0}, {sT0}, {RSTD_OFF}
    v_lshl_add_u32 {vRd}, {vH}, 4, {sT0}
    v_lshl_add_u32 {vRw}, {vN1}, 2, {sT0}
    ds_write_b32 {vRw}, {vT2}
    s_waitcnt lgkmcnt(0)
    s_barrier
    ds_read_b64 {augX[1][0:2]}, {vRs}
    """)
    for i in range(4): a(f"ds_read_b128 {rs[4*i:4*i+4]}, {vRd} offset:{32*i}")
    for i in range(4): a(f"ds_read_b128 {bF[1][4*i:4*i+4]}, {vRt} offset:{4096 + 1024*i}")
    a(f"v_mov_b32 {vT2}, 0xc3a0\nv_cndmask_b32 {augF[0]}, 0, {vT2}, {sMask}")
    for i in range(1, 4): a(f"v_mov_b32 {augX[0][i]}, 0\nv_mov_b32 {augF[i]}, 0")
    a(f"""
    v_mov_b32 {augX[1][2]}, 0
    v_mov_b32 {augX[1][3]}, 0
    {MF32} {acc[0][0]}, {augX[0]}, {augF}, {acc[0][0]}
    {MF32} {acc[0][2]}, {augX[0]}, {augF}, {acc[0][2]}
    s_waitcnt lgkmcnt(8)
    v_rcp_f32 {vT2}, {augX[1][1]}
    {MF32} {acc[1][0]}, {augX[1]}, {augF}, {acc[1][0]}
    {MF32} {acc[1][2]}, {augX[1]}, {augF}, {acc[1][2]}
    ds_write_b32 {vRw}, {vT2} offset:128
    s_lshl_b32 {sT0}, {sUnit}, 5
    v_add_u32 {vT0}, {sT0}, {vN1}
    v_sub_u32 {vT1}, 351, {vT0}
    s_mov_b32 {sT0}, {2*32*V_ROW}
    v_mul_lo_u32 {vT2}, {vH}, {sT0}
    v_lshl_add_u32 {vO1}, {vT0}, 4, {vT2}
    v_lshl_add_u32 {vO2}, {vT1}, 4, {vT2}
    v_cmp_gt_u32 vcc, 8, {vN1}
    v_add_u32 {vT1}, {160*16}, {vO1}
    v_mov_b32 {vT2}, 0x7f000000
    v_cndmask_b32 {vO3}, {vT2}, {vT1}, vcc
    """)
    NEG0 = "neg_lo:[1,0,0] neg_hi:[1,0,0]"; NEG1 = "neg_lo:[0,1] neg_hi:[0,1]"
    tt = bX[0]
    a(".p2align 3")
    for g in range(2):
        if g:
            for i in range(4): a(f"ds_read_b128 {rs[4*i:4*i+4]}, {vRd} offset:{128*g + 32*i}")
        A_ = acc[g]
        for i in range(0, 16, 2):
            a(f"v_pk_fma_f32 {tt[i:i+2]}, {A_[3][i:i+2]}, {vMu}, {A_[1][i:i+2]}\nv_pk_fma_f32 {A_[3][i:i+2]}, {A_[1][i:i+2]}, {vMu}, {A_[3][i:i+2]} {NEG0}")
        for i in range(0, 16, 2):
            a(f"v_pk_add_f32 {A_[1][i:i+2]}, {A_[0][i:i+2]}, {A_[2][i:i+2]} {NEG1}\nv_pk_add_f32 {A_[0][i:i+2]}, {A_[0][i:i+2]}, {A_[2][i:i+2]}")
        a("s_waitcnt lgkmcnt(0)\ns_nop 0")
        for i in range(0, 16, 2): a(f"v_pk_mul_f32 {Rv[g][i:i+2]}, {Rv[g][i:i+2]}, {rs[i:i+2]}")
        for i in range(8): a(f"v_cvt_pk_bf16_f32 {Rv[g][i]}, {Rv[g][2*i]}, {Rv[g][2*i+1]}")
        B = [pm[0:8], pm[8:16], tt[0:8], Rv[g][8:16]]
        cv = lambda t, src: [f"v_cvt_pk_bf16_f32 {B[t][i]}, {src[2*i]}, {src[2*i+1]}" for i in range(8)]
        mf = lambda t: [f"{MF32} {A_[t]}, {Rv[g][0:4]}, {B[t][0:4]}, 0", f"{MF32} {A_[t]}, {Rv[g][4:8]}, {B[t][4:8]}, {A_[t]}"]
        for l in cv(2, tt) + cv(0, A_[0])[0:2]: a(l)
        for l in weave(mf(2) + mf(0) + mf(1) + mf(3), (cv(0, A_[0])[2:] + cv(1, A_[1]) + cv(3, A_[3]), [4, 4, 4, 4, 4, 2, 0, 0]), (["s_nop 1", "s_nop 0"], [0, 0, 0, 0, 0, 2, 0, 0])): a(l)
    ST(4)
    def rotate(C, Sn, g):
        a(f"""
        v_mul_f32 {vT0}, {C}, {vRot[2*g+1]}
        v_mul_f32 {C}, {C}, {vRot[2*g]}
        v_fma_f32 {C}, -{Sn}, {vRot[2*g+1]}, {C}
        v_fma_f32 {Sn}, {Sn}, {vRot[2*g]}, {vT0}
        """)
    a(f"s_cmp_lg_u32 {sUnit}, 0\ns_cbranch_scc1 K1_dgen")
    o3 = [bX[0], bX[1]]
    for g in range(2):
        a(f"v_mov_b32 {vT1}, {acc[g][2][1]}\nv_mov_b32 {vT2}, {acc[g][3][1]}")
        rotate(vT1, vT2, g)
        for i in range(16):
            c_, s_ = (vT1, vT2) if i == 1 else (acc[g][2][i], acc[g][3][i])
            a(f"v_cvt_pk_bf16_f32 {o3[i//8][2*(i%8)+1-g]}, {c_}, {s_}")
        for k in (2, 3):
            for i in range(0, 16, 2): a(f"v_pk_mul_f32 {acc[g][k][i:i+2]}, {acc[g][k][i:i+2]}, {vMu}")
    for i in range(0, 16, 2):
        kap = (i % 4) // 2 + 4 * (i // 4)
        a(f"s_add_u32 {sT0}, {sT1}, {kap*32*V_ROW}\nbuffer_store_dwordx4 {o3[i//8][2*(i%8):2*(i%8)+4]}, {vO3}, {r2}, {sT0} offen {SC}")
    a(".p2align 3\nK1_dgen:")
    rotate(acc[0][0][1], acc[0][2][1], 0); rotate(acc[0][1][1], acc[0][3][1], 0)
    a("s_nop 1\ns_nop 0")
    rotate(acc[1][0][1], acc[1][2][1], 1); rotate(acc[1][1][1], acc[1][3][1], 1)
    ob = [bF[0], bF[1], pm]
    for i in range(0, 16, 2):
        kap = (i % 4) // 2 + 4 * (i // 4)
        o = ob[i // 4][4*(i%4):4*(i%4)+8] if i < 12 else acc[0][i - 12][0:8]
        if kap: a(f"s_add_u32 {sT0}, {sT1}, {kap*32*V_ROW}")
        for k in range(2):
            for sg in range(2):
                for g in range(2): a(f"v_cvt_pk_bf16_f32 {o[4*k+2*sg+1-g]}, {acc[g][k][i+sg]}, {acc[g][2+k][i+sg]}")
            a(f"buffer_store_dwordx4 {o[4*k:4*k+4]}, {vO2 if k else vO1}, {r2}, {sT0 if kap else sT1} offen {SC}")
    ST(5); ST(7); ST.flush(pWS, sW)
    a("K1_end:\ns_endpgm")
    if dbg:
        out = []; inloop = False; hl = False
        for l in a.lines:
            t = l.strip()
            if t in ("K1_mloop:", "K1_dloop:"): inloop = True
            if t in ("K1_mloope:", "K1_dloope:"): inloop = False
            if 'q' in dbg and inloop and (t.startswith("v_fmac") or t.startswith("v_lshlrev_b32") or t.startswith("v_and_b32")): continue
            if 'f' in dbg and inloop and t.startswith(MF16): continue
            if 'r' in dbg and inloop and t.startswith("ds_read"): continue
            if 't' in dbg and inloop and t.startswith("ds_read_b64_tr"): continue
            if 'm' in dbg and inloop and t.startswith(MF32): continue
            if 'd' in dbg and t.endswith(" lds"): continue
            if 'P' in dbg and t.startswith("buffer_load_dword v") and "s[32:35]" in t: continue
            if 's' in dbg and (t.startswith("v_add_f32 v3") or t.startswith("v_fmac_f32 v3")) and not inloop and hl: continue
            if 'S' in dbg and hl and (t.startswith("v_") or t.startswith("ds_")): continue
            if t in ("K1_hploop:", "K1_hmloop:"): hl = True
            if t == "K1_hmix:" or t.startswith("s_cbranch_scc1 K1_hmloop"): hl = False
            if t == "K1_htail:": hl = False
            out.append(l)
        a.lines = out
    return a.text(), max(hi, V.hi)
if __name__ == "__main__":
    import sys
    for st in (False, True):
        t, nv = gen_k1(st)
        open("k1_st.s" if st else "k1.s", "w").write(module([("k1_kernel", t, nv, None)], [("k1_kernel", 256, 512, K1_LDS)], extra_text="code_end:\n"))
    print("vgprs", nv)
```

```python
from asmlib import *
from k1 import *
SLOT = 43008
VA_OFF = 3*SLOT; XA_OFF = VA_OFF + 16384; CNT_OFF = XA_OFF + 16384
QX_OFF = VA_OFF; RECV_OFF = VA_OFF + 20480
XL_OFF = SLOT
K2_LDS = CNT_OFF + 64
Z_BYTES = 256*4*3072
FLP_OFF = 1024*128; FLD_OFF = FLP_OFF + 176*128
SPIN_MAX = 1 << 20

def gen_k2(stamp=False, rotmode=0, fine=0, npre=3):
    a = Asm("K2"); ST0 = Stamps(a, 1, stamp)
    class _S:
        init = ST0.init; flush = ST0.flush
        def __call__(self, k, f=0):
            if k == 0 or f == fine: ST0(k)
    ST = _S()
    S = Alloc('s', 3, 72); V = Alloc('v', 1, 256)
    pX = S(2); pB = S(4); pWS = S(2)
    r0 = S(4); r1 = S(4); r2 = S(4); r3 = S(4); r4 = S(4)
    sW, sQ, sJ, sGp, sCb, sTask, sKap, sT, sHas, sT0, sT1, sT2, sC, sSlot, sCk, sNk = [S() for _ in range(16)]
    sMask = S(2)
    vL = V(); vT0 = V(); vT1 = V(); vT2 = V(); vL16 = V()
    a("s_cmp_ge_u32 s2, 256\ns_cbranch_scc1 K2_end")
    ST(0); ST.init()
    a(f"""
    s_load_dwordx2 {pWS}, s[0:1], 80
    s_load_dwordx2 {pX}, s[0:1], 0
    s_load_dwordx4 {pB}, s[0:1], 56
    v_lshrrev_b32 {vT0}, 6, v0
    v_and_b32 {vL}, 63, v0
    v_readfirstlane_b32 {sW}, {vT0}
    v_lshlrev_b32 {vL16}, 4, {vL}
    s_and_b32 {sJ}, s2, 1
    s_bfe_u32 {sGp}, s2, 0x20001
    s_lshl_b32 {sGp}, {sGp}, 3
    s_bfe_u32 {sT1}, s2, 0x30003          ; gpl
    s_add_u32 {sGp}, {sGp}, {sT1}
    s_lshr_b32 {sCb}, s2, 6
    s_lshl_b32 {sNk}, {sGp}, 1
    s_add_u32 {sNk}, {sNk}, {sJ}
    s_lshr_b32 {sT0}, s2, 3               ; idx
    s_and_b32 {sKap}, s2, 7
    s_mul_i32 {sTask}, {sKap}, 22
    s_add_u32 {sTask}, {sTask}, {sT0}
    s_lshl_b32 {sKap}, {sKap}, 1
    s_cmp_ge_u32 {sT0}, 11
    s_cselect_b32 {sT2}, 11, 0
    s_addc_u32 {sKap}, {sKap}, 0
    s_sub_u32 {sT}, {sT0}, {sT2}
    s_cmp_lt_u32 {sT0}, 22
    s_cselect_b32 {sHas}, 1, 0
    s_and_b32 {sQ}, {sW}, 3
    s_cmp_lt_u32 {sW}, 4
    s_cbranch_scc1 K2_comp
    """)
    mark = V.mark()
    sSoW = S(); sSoH = S(); sMW = S(); sMH = S(); vFl = V(4); vOne = V(); vWo = V(4); vPo = V(16); vXo = V(4); vPa = V(); vPg = V()
    sM1k = S(); a(f"s_mov_b32 {sM1k}, -1024")
    if rotmode == 0: a(f"s_mov_b32 {sCk}, 0")
    elif rotmode == 1: a(f"s_add_u32 {sCk}, {sCb}, {sT1}\ns_and_b32 {sCk}, {sCk}, 3\ns_mul_i32 {sCk}, {sCk}, 9\ns_lshr_b32 {sCk}, {sCk}, 2")
    elif rotmode == 2: a(f"s_add_u32 {sCk}, {sCb}, {sT1}\ns_and_b32 {sCk}, {sCk}, 1\ns_lshl_b32 {sCk}, {sCk}, 2")
    elif rotmode == 3: a(f"s_lshl_b32 {sCk}, {sCb}, 1\ns_add_u32 {sCk}, {sCk}, {sT1}\ns_and_b32 {sCk}, {sCk}, 7")
    a(f"""
    s_lshr_b32 {sT0}, {sQ}, 1
    s_and_b32 {sT1}, {sQ}, 1               ; half
    s_lshl_b32 {sT2}, {sT0}, 2
    s_add_u32 {sT2}, {sT2}, {sCb}
    s_mul_i32 {sSoW}, {sT2}, {1728*160}
    s_mul_i32 {sT2}, {sJ}, {864*160}
    s_add_u32 {sSoW}, {sSoW}, {sT2}
    s_mul_i32 {sT2}, {sT1}, 7680
    s_add_u32 {sSoW}, {sSoW}, {sT2}
    s_mul_i32 {sMW}, {sQ}, 7680
    s_xor_b32 {sT2}, {sNk}, 1
    s_xor_b32 {sT2}, {sT2}, {sT0}
    s_mul_i32 {sSoH}, {sT2}, {54*2048}
    s_mul_i32 {sT2}, {sJ}, {27*2048}
    s_add_u32 {sSoH}, {sSoH}, {sT2}
    s_mul_i32 {sT2}, {sT1}, 3072
    s_add_u32 {sSoH}, {sSoH}, {sT2}
    s_mul_i32 {sMH}, {sQ}, 3072
    s_add_u32 {sMH}, {sMH}, 30720
    v_lshrrev_b32 {vT0}, 5, {vL}
    v_mul_u32_u24 {vT0}, {V_ROW-512}, {vT0}
    v_add_u32 {vT0}, {vT0}, {vL16}
    v_mov_b32 {vOne}, 1
    s_sub_u32 {sT2}, 0, {sKap}
    s_cmp_eq_u32 {sKap}, 0
    s_cselect_b32 {sT2}, 16, {sT2}
    s_lshl_b32 {sT1}, {sQ}, 9
    s_add_u32 {sT2}, {sT2}, {sT1}
    s_add_u32 {sT1}, {sT1}, {sKap}
    v_lshrrev_b32 {vT1}, 3, {vL}
    v_and_b32 {vT2}, 7, {vL}
    v_lshlrev_b32 {vT2}, 4, {vT2}
    v_lshl_add_u32 {vWo[0]}, {vT1}, 5, {sT1}
    v_lshl_add_u32 {vWo[2]}, {vT1}, 5, {sT2}
    v_add_u32 {vWo[3]}, 256, {vWo[2]}
    v_and_b32 {vWo[2]}, 2047, {vWo[2]}
    v_mul_u32_u24 {vWo[0]}, 1408, {vWo[0]}
    v_mul_u32_u24 {vWo[2]}, 1408, {vWo[2]}
    v_mul_u32_u24 {vWo[3]}, 1408, {vWo[3]}
    v_add_u32 {vWo[0]}, {vWo[0]}, {vT2}
    v_add_u32 {vWo[2]}, {vWo[2]}, {vT2}
    v_add_u32 {vWo[1]}, {256*1408 - 1024}, {vWo[0]}
    v_add3_u32 {vWo[3]}, {vWo[3]}, {vT2}, {sM1k}
    s_waitcnt lgkmcnt(0)
    """)
    ST(1)
    a.srd_off(r0, pWS, WS_W2T, W2T_BYTES)
    a.srd_off(r1, pWS, WS_H, H_BYTES)
    a.srd_off(r2, pWS, WS_V, V_BYTES)
    a.srd_off(r3, pWS, WS_FL, FL_BYTES)
    a.srd_off(r4, pWS, WS_WP, WP_BYTES)
    a(f"""
    s_cmp_eq_u32 {sHas}, 0
    s_cbranch_scc1 K2_nov
    s_lshl_b32 {sT0}, {sKap}, 5
    s_lshl_b32 {sT1}, {sQ}, 3
    s_add_u32 {sT0}, {sT0}, {sT1}
    s_mul_i32 {sT0}, {sT0}, {V_ROW}
    s_lshl_b32 {sT1}, {sT}, 9
    s_add_u32 {sT0}, {sT0}, {sT1}
    s_lshl_b32 {sT1}, {sQ}, 12
    s_add_u32 m0, {sT1}, {VA_OFF}
    """)
    for i in range(4):
        a(f"s_add_u32 {sT1}, {sT0}, {i*(2*V_ROW-1024)}\nbuffer_load_dwordx4 {vT0}, {r2}, {sT1} offen offset:{1024*i} lds")
    a(f"s_lshl_b32 {sT1}, {sQ}, 11\ns_add_u32 m0, {sT1}, {XA_OFF}\ns_lshl_b32 {sT0}, {sT}, 7")
    for i in range(4):
        a(f"buffer_load_dwordx4 {vWo[i]}, {r4}, {sT0} offen offset:{1024*(i%2)} lds")
        if i == 1: a("s_add_u32 m0, m0, 8192\ns_nop 0")
    a("K2_nov:")
    ST(1, 2)
    if fine == 2: a("s_waitcnt vmcnt(4)"); ST(2, 2); a("s_waitcnt vmcnt(0)"); ST(3, 2)
    def run(srd, soff, n_full, half, flags=""):
        for i in range(n_full + half):
            if i == n_full: a("s_mov_b32 exec_hi, 0")
            a(f"buffer_load_dwordx4 {vL16}, {srd}, {soff} offen offset:{1024*(i%4)} {flags} lds")
            if i == n_full: a("s_mov_b32 exec_hi, -1")
            if i % 4 == 3 and i + 1 < n_full + half: a(f"s_add_u32 m0, m0, 4096\ns_add_u32 {soff}, {soff}, 4096")
    def issue(c):
        slot = (c % 3) * SLOT
        a(f"""
        s_add_u32 m0, {sMH}, {slot}
        s_mul_i32 {sT0}, {sCk}, 6144
        s_add_u32 {sT0}, {sT0}, {sSoH}
        """)
        run(r1, sT0, 3, 0)
        a(f"""
        s_add_u32 m0, {sMW}, {slot}
        s_mul_i32 {sT0}, {sCk}, 15360
        s_add_u32 {sT0}, {sT0}, {sSoW}
        """)
        run(r0, sT0, 7, 1)
        a(f"s_add_u32 {sCk}, {sCk}, 1\ns_cmp_eq_u32 {sCk}, 9\ns_cselect_b32 {sCk}, 0, {sCk}")
    issue(0)
    ST(4, 2)
    if fine == 2: a("s_waitcnt vmcnt(8)"); ST(5, 2); a("s_waitcnt vmcnt(0)"); ST(6, 2)
    a("s_waitcnt vmcnt(11)\ns_barrier")
    ST(2)
    issue(1); issue(2)
    a.srd_off(r2, pWS, WS_P, P_BYTES)
    sPo = S()
    a(f"""
    s_lshl_b32 {sT0}, {sTask}, 7
    s_add_u32 {sT0}, {sT0}, {FLP_OFF}
    s_cmp_eq_u32 {sHas}, 0
    s_cselect_b32 {sT0}, 0x7f000000, {sT0}
    s_cmp_lg_u32 {sQ}, 0
    s_cselect_b32 {sT0}, 0x7f000000, {sT0}
    v_mov_b32 {vT1}, {sT0}
    v_lshrrev_b32 {vT0}, 4, {vL}
    v_lshlrev_b32 {vT2}, 5, {vT0}
    v_xor_b32 {vPa}, {vT2}, {vL16}
    s_lshl_b32 {sT0}, {sQ}, 12
    s_add_u32 {sT0}, {sT0}, {VA_OFF}
    v_add_u32 {vPa}, {sT0}, {vPa}
    v_mul_u32_u24 {vPg}, {P_GRP}, {vT0}
    v_bfe_u32 {vT0}, {vL}, 3, 1
    v_mul_u32_u24 {vT0}, {11*2048}, {vT0}
    v_and_b32 {vT2}, 0x70, {vL16}
    v_add3_u32 {vPg}, {vPg}, {vT0}, {vT2}
    s_cmp_gt_u32 {sT}, 5
    s_subb_u32 {sPo}, {sT}, 0
    s_cmp_eq_u32 {sT}, 5
    s_cselect_b32 {sPo}, 10, {sPo}
    s_lshl_b32 {sPo}, {sPo}, 4
    s_add_u32 {sPo}, {sPo}, {sKap}
    s_lshl_b32 {sPo}, {sPo}, 7
    s_mul_i32 {sT0}, {sQ}, {16*P_GRP}
    s_add_u32 {sPo}, {sPo}, {sT0}
    s_cmp_eq_u32 {sHas}, 0
    s_cselect_b32 {sPo}, 0, {sPo}
    s_cselect_b32 {sT0}, 0x7f000000, 0
    v_or_b32 {vPg}, {sT0}, {vPg}
    s_and_b32 {sT0}, s2, 7
    s_lshl_b32 {sT0}, {sT0}, 7
    s_add_u32 {sT0}, {sT0}, {FLD_OFF}
    v_mov_b32 {vT2}, {sT0}
    s_waitcnt vmcnt(22)
    s_barrier
    """)
    for i in range(4): a(f"ds_read_b128 {vPo[4*i:4*i+4]}, {vPa} offset:{1024*i}")
    for i in range(4):
        a(f"s_waitcnt lgkmcnt({3-i})\nbuffer_store_dwordx4 {vPo[4*i:4*i+4]}, {vPg}, {r2}, {sPo} offen sc1\ns_add_u32 {sPo}, {sPo}, {4*P_GRP}")
    for i in range(3):
        a(f"""
        v_add_u32 {vT0}, {64*i}, {vL}
        v_mul_u32_u24 {vPa}, 3277, {vT0}
        v_lshrrev_b32 {vPa}, 16, {vPa}
        v_mul_u32_u24 {vPg}, 20, {vPa}
        v_sub_u32 {vT0}, {vT0}, {vPg}
        v_cmp_le_u32 vcc, 10, {vT0}
        v_mul_u32_u24 {vPa}, {64*1280}, {vPa}
        v_lshl_add_u32 {vPa}, {vT0}, 4, {vPa}
        v_add_u32 {vPg}, {640-160}, {vPa}
        v_cndmask_b32 {vXo[i]}, {vPa}, {vPg}, vcc
        """)
    ST(3)
    for c in range(1, 7):
        a(f"s_waitcnt vmcnt({15 if c == 1 else 12 if c == 3 else 11})\ns_barrier")
        ST(c, 1)
        if c == 2: a(f"s_mov_b64 exec, 1\nbuffer_store_dword {vOne}, {vT1}, {r3}, 0 offen sc1\ns_mov_b64 exec, -1")
        if c == 6: a(f"buffer_load_dword {vFl[0]}, {vT2}, {r3}, 0 offen sc1")
        issue(c + 2)
    a.srd_off(r2, pWS, WS_P, P_BYTES)
    a(f"""
    s_mov_b32 {sC}, 0
    s_waitcnt vmcnt(11)
    s_barrier
    """)
    ST(7, 1)
    a(f"""
    s_lshr_b32 {sT0}, s2, 3
    s_lshl_b32 {sT0}, {sT0}, 2
    s_add_u32 {sT0}, {sT0}, {sQ}
    s_cmp_lg_u32 {sT0}, 124
    s_cbranch_scc1 K2_pchk
    v_lshlrev_b32 {vT0}, 7, {vL}
    v_add_u32 {vT0}, {FLP_OFF}, {vT0}
    v_add_u32 {vPa}, 8192, {vT0}
    v_min_u32 {vPg}, 47, {vL}
    v_lshlrev_b32 {vPg}, 7, {vPg}
    v_add_u32 {vPg}, {FLP_OFF + 16384}, {vPg}
    K2_coll:
    buffer_load_dword {vFl[1]}, {vT0}, {r3}, 0 offen sc1
    buffer_load_dword {vFl[2]}, {vPa}, {r3}, 0 offen sc1
    buffer_load_dword {vFl[3]}, {vPg}, {r3}, 0 offen sc1
    s_add_u32 {sC}, {sC}, 1
    s_waitcnt vmcnt(0)
    v_and_b32 {vFl[1]}, {vFl[1]}, {vFl[2]}
    v_and_b32 {vFl[0]}, {vFl[1]}, {vFl[3]}
    v_cmp_eq_u32 vcc, 0, {vFl[0]}
    s_cmp_ge_u32 {sC}, {SPIN_MAX}
    s_cbranch_scc1 K2_pub
    s_cbranch_vccnz K2_coll
    K2_pub:
    s_mov_b64 exec, 1
    buffer_store_dword {vOne}, {vT2}, {r3}, 0 offen sc1
    s_mov_b64 exec, -1
    s_branch K2_pok
    K2_pchk:
    v_cmp_eq_u32 vcc, 0, {vFl[0]}
    s_add_u32 {sC}, {sC}, 1
    s_cbranch_vccz K2_pok
    s_cmp_ge_u32 {sC}, {SPIN_MAX}
    s_cbranch_scc1 K2_pok
    s_sleep 2
    buffer_load_dword {vFl[0]}, {vT2}, {r3}, 0 offen sc1
    s_waitcnt vmcnt(0)
    s_branch K2_pchk
    K2_pok:
    s_mul_i32 m0, {sQ}, 10752
    s_mul_i32 {sT0}, {sNk}, {P_GRP}
    s_add_u32 {sT0}, {sT0}, m0
    """)
    ST(4)
    run(r2, sT0, 10, 1, "sc1")
    a.srd_off(r1, pWS, WS_Z, Z_BYTES)
    a(f"""
    s_xor_b32 {sT0}, s2, 1
    s_lshl_b32 {sT0}, {sT0}, 2
    s_add_u32 {sT0}, {sT0}, {sQ}
    s_lshl_b32 {sT1}, {sT0}, 7
    v_mov_b32 {vT1}, {sT1}
    s_mul_i32 {sT0}, {sT0}, 3072
    s_mov_b32 {sC}, 0
    """)
    a.srd(r0, pX[0], pX[1], X_BYTES)
    a.srd(r4, pB[0], pB[1], 1280)
    a(f"""
    s_lshl_b32 {sT1}, {sQ}, 9
    s_add_u32 {sT1}, {sT1}, {sNk}
    s_mul_i32 {sT1}, {sT1}, 1280
    s_mul_i32 {sT2}, {sCb}, 160
    s_add_u32 {sT1}, {sT1}, {sT2}
    s_mul_i32 {sPo}, {sQ}, 2560
    s_waitcnt vmcnt(11)
    s_barrier
    s_add_u32 m0, {sPo}, {XL_OFF}
    s_nop 0
    buffer_load_dwordx4 {vXo[0]}, {r0}, {sT1} offen lds
    s_add_u32 m0, m0, 1024
    s_nop 0
    buffer_load_dwordx4 {vXo[1]}, {r0}, {sT1} offen lds
    s_add_u32 m0, m0, 1024
    s_mov_b32 exec_hi, 0
    buffer_load_dwordx4 {vXo[2]}, {r0}, {sT1} offen lds
    s_mov_b32 m0, {XL_OFF + 10240}
    s_mov_b32 exec_lo, 0xfffff
    buffer_load_dwordx4 {vXo[0]}, {r4}, {sT2} offen lds
    s_mov_b64 exec, -1
    s_waitcnt vmcnt(4)
    s_barrier
    """)
    ST(5)
    a(f"""
    s_waitcnt vmcnt(0)
    s_barrier
    K2_zpoll:
    buffer_load_dword {vFl[0]}, {vT1}, {r3}, 0 offen sc1
    s_add_u32 {sC}, {sC}, 1
    s_waitcnt vmcnt(0)
    v_cmp_eq_u32 vcc, 0, {vFl[0]}
    s_cmp_ge_u32 {sC}, {SPIN_MAX}
    s_cbranch_scc1 K2_zok
    s_cbranch_vccnz K2_zpoll
    K2_zok:
    s_mul_i32 {sT1}, {sQ}, 3072
    s_add_u32 m0, {sT1}, {RECV_OFF}
    s_nop 0
    """)
    ST(6)
    run(r1, sT0, 2, 1, "sc1")
    a("s_waitcnt vmcnt(0)\ns_barrier")
    ST.flush(pWS, sW)
    a("s_endpgm")
    hi = V.hi
    V.release(mark)
    vH = V(); vG = V(); vR16 = V(); vOffX = V(); vA0 = V(); vA1 = V()
    vStep = V(); vBase = V(); vC2 = V(2); Rf = V(8); G10 = V(4); vM = G10[3]; vKd = G10[2]
    G = V(100); BUF = V(56); KEEP = V(20); SEND = V(20); TAB = V(32)
    sNu, sSg, sXo, sK0 = S(), S(), S(), S(); sMk2 = S(2)
    a(f"""
    K2_comp:
    s_and_b32 {sNu}, {sW}, 1
    s_lshr_b32 {sSg}, {sW}, 1
    v_and_b32 {vM}, 31, {vL}
    v_lshrrev_b32 {vH}, 5, {vL}
    v_lshrrev_b32 {vG}, 4, {vL}
    v_and_b32 {vR16}, 15, {vL}
    v_mov_b32 {vT0}, {CNT_OFF}
    v_mov_b32 {vT1}, 0
    ds_write_b32 {vT0}, {vT1}
    s_cmp_eq_u32 {sHas}, 0
    s_cbranch_scc1 K2_notab
    v_lshrrev_b32 {vT0}, 1, {vM}
    s_lshl_b32 {sT0}, {sW}, 4
    v_add_u32 {vT0}, {sT0}, {vT0}
    v_cvt_f32_u32 {vStep}, {vT0}
    v_mul_f32 {vStep}, {fhex(1/64)}, {vStep}
    v_and_b32 {vT0}, 1, {vM}
    v_cvt_f32_u32 {vT0}, {vT0}
    v_mul_f32 {vBase}, {fhex(-0.25)}, {vT0}
    v_lshlrev_b32 {vT0}, 1, {vH}
    v_cvt_f32_u32 {vT0}, {vT0}
    v_fmac_f32 {vBase}, {vT0}, {vStep}
    """)
    for s in range(8):
        for jj in range(4):
            o = 8*s + (jj % 2) + 4*(jj // 2); t = BUF[2*jj:2*jj+2]
            if o == 0: a(f"v_cos_f32 {t[0]}, {vBase}\nv_sin_f32 {t[1]}, -{vBase}")
            else: a(f"v_fmamk_f32 {t[1]}, {vStep}, {fhex(o)}, {vBase}\nv_cos_f32 {t[0]}, {t[1]}\nv_sin_f32 {t[1]}, -{t[1]}")
        for jj in range(4): a(f"v_cvt_pk_bf16_f32 {TAB[4*s+jj]}, {BUF[2*jj]}, {BUF[2*jj+1]}")
    a("K2_notab:\ns_waitcnt lgkmcnt(0)")
    ST(1)
    a.srd(r4, pB[2], pB[3], X_BYTES)
    WP = [KEEP[0:8], KEEP[8:16]]
    a(f"""
    v_lshlrev_b32 {vT0}, 1, {vR16}
    v_bfe_u32 {vT1}, {vL}, 4, 1
    s_cmp_gt_u32 {sT}, 5
    s_cselect_b32 {sT0}, 1, 0
    v_xor_b32 {vT1}, {sT0}, {vT1}
    v_add_u32 {vKd}, {vT0}, {vT1}
    v_mul_u32_u24 {vT0}, {64*1280}, {vR16}
    v_lshl_add_u32 {vOffX}, {vG}, 3, {vT0}
    s_mul_i32 {sT0}, {sCb}, 160
    s_mul_i32 {sT1}, {sSg}, 640
    s_add_u32 {sT0}, {sT0}, {sT1}
    s_lshl_b32 {sXo}, {sNu}, 10
    s_add_u32 {sXo}, {sXo}, {sNk}
    s_mul_i32 {sXo}, {sXo}, 1280
    s_add_u32 {sXo}, {sXo}, {sT0}
    s_sub_u32 {sK0}, 162, {sNu}
    s_cmp_eq_u32 {sSg}, 0
    s_cselect_b32 {sK0}, {sNu}, {sK0}
    """)
    def ggen(t, tmp):
        st = [[tmp[8*k+2*i:8*k+2*i+2] for i in range(4)] for k in range(2)]
        a(f"""
        s_mul_i32 {sT0}, {sCb}, 80
        s_add_u32 {sT0}, {sT0}, {16*t}
        v_add_u32 {vT0}, {sT0}, {vR16}
        v_cvt_f32_u32 {vStep}, {vT0}
        v_mul_f32 {vStep}, {fhex(1/640)}, {vStep}
        v_lshl_add_u32 {vT0}, {vH}, 3, {sK0}
        v_cvt_f32_u32 {vT0}, {vT0}
        v_and_b32 {vT1}, 1, {vG}
        v_cvt_f32_u32 {vT1}, {vT1}
        v_mul_f32 {vT1}, {fhex(0.25)}, {vT1}
        v_fma_f32 {vBase}, {vT0}, {vStep}, {vT1}
        v_mul_f32 {vT0}, {fhex(32.0)}, {vStep}
        v_cos_f32 {vT0}, {vT0}
        """)
        for w in range(5):
            cur = st[w % 2]
            if w < 2:
                for j in range(8):
                    o = 32*w + 2*(j % 4) + 16*(j // 4); d = cur[j//2][j % 2]
                    if o == 0: a(f"v_cos_f32 {d}, {vBase}\nv_add_f32 {vC2[0]}, {vT0}, {vT0}\nv_add_f32 {vC2[1]}, {vT0}, {vT0}")
                    else: a(f"v_fmamk_f32 {d}, {vStep}, {fhex(o)}, {vBase}\nv_cos_f32 {d}, {d}")
            else:
                for i in range(4): a(f"v_pk_fma_f32 {cur[i]}, {st[(w+1)%2][i]}, {vC2}, {cur[i]} neg_lo:[0,0,1] neg_hi:[0,0,1]")
            for i in range(4):
                lo = cur[i][0]
                if w == 0 and i == 0:
                    a(f"v_cndmask_b32 {vT1}, {lo}, 0.5, {sMask}"); lo = vT1
                up = cur[i][1]
                if w == 4 and i == 3:
                    a(f"v_mul_f32 {vT1}, 0.5, {up}\nv_cndmask_b32 {vT1}, {up}, {vT1}, {sMk2}"); up = vT1
                a(f"v_cvt_pk_bf16_f32 {G[20*t+4*w+i]}, {lo}, {up}")
    def gmask():
        a(f"v_add_u32 {vT0}, {sW}, {vG}\nv_cmp_eq_u32 {sMask}, 0, {vT0}\ns_cmp_eq_u32 {sW}, 2\ns_cselect_b32 {sMk2[1]}, -1, 0\ns_mov_b32 {sMk2[0]}, 0")
    gmask()
    for t in range(npre): ggen(t, BUF)
    GSCHED = {7 - (4 - t): t for t in range(npre, 5)}; RSCHED = 7 - (5 - npre)
    ST(2)
    a(f"s_barrier\ns_cmp_eq_u32 {sHas}, 0\ns_cbranch_scc1 K2_t2done")
    DAT = Reg('v', G.base + 60, 64); assert BUF.base == G.base + 100
    acc = [BUF[24:40], BUF[40:56]]
    fr = lambda sg, s: DAT[32*sg+4*s:32*sg+4*s+4]
    a(f"""
    v_lshlrev_b32 {vA0}, 4, {vKd}
    v_lshl_add_u32 {vA0}, {vH}, 9, {vA0}
    v_add_u32 {vA0}, {VA_OFF}, {vA0}
    s_lshl_b32 {sT0}, {sW}, 11
    s_add_u32 {sT0}, {sT0}, {XA_OFF}
    v_lshl_add_u32 {vA1}, {vKd}, 2, {sT0}
    v_lshl_add_u32 {vA1}, {vH}, 8, {vA1}
    """)
    ST(1, 1)
    rd = [[f"ds_read_b64 {fr(sg, s)[2*jp:2*jp+2]}, {vA0} offset:{(4*s+2*jp)*512 + 8*sg}" for sg in range(2) for jp in range(2)] for s in range(8)]
    for sg in range(2):
        for e in range(8): a(f"ds_read_b32 {WP[sg][e]}, {vA1} offset:{8192*sg + 128*((e%2) + 4*(e//2))}")
    for s in range(3):
        for l in rd[s]: a(l)
    for s in range(8):
        a(f"s_waitcnt lgkmcnt({4*min(2, 7-s)})")
        for sg in range(2): a(f"{MF32} {acc[sg]}, {TAB[4*s:4*s+4]}, {fr(sg, s)}, {acc[sg] if s else 0}")
        if s + 3 < 8:
            for l in rd[s+3]: a(l)
    ST(2, 1)
    Wf = [DAT[0:16], DAT[16:32]]; tm = [DAT[32+2*i:34+2*i] for i in range(6)]; out = [DAT[48:56], DAT[56:64]]
    for sg in range(2):
        for e in range(8): a(f"v_lshlrev_b32 {Wf[sg][2*e]}, 16, {WP[sg][e]}\nv_and_b32 {Wf[sg][2*e+1]}, 0xffff0000, {WP[sg][e]}")
    def cmul(y, x, w):
        return [f"v_pk_mul_f32 {y}, {x}, {w} op_sel_hi:[0,1]", f"v_pk_fma_f32 {y}, {x}, {w}, {y} op_sel:[1,1,0] op_sel_hi:[1,0,1] neg_hi:[0,1,0]"]
    a(f"s_cmp_eq_u32 {sT}, 5\ns_cselect_b32 {sT0}, 0, 64\nv_cmp_ge_u32 vcc, {sT0}, {vKd}\ns_cmp_eq_u32 {sKap}, 0\ns_cbranch_scc1 K2_mid0")
    for e in range(8):
        A_, B_ = acc[0][2*e:2*e+2], acc[1][2*e:2*e+2]
        a(f"v_pk_add_f32 {tm[0]}, {A_}, {B_} op_sel:[0,1] op_sel_hi:[1,0] neg_lo:[0,1]")
        a(f"v_pk_add_f32 {tm[1]}, {A_}, {B_} op_sel:[0,1] op_sel_hi:[1,0] neg_hi:[0,1]")
        m1 = cmul(tm[2], tm[0], Wf[0][2*e:2*e+2]); m2 = cmul(tm[3], tm[1], Wf[1][2*e:2*e+2])
        a("\n".join([m1[0], m2[0], m1[1], m2[1]]))
        a(f"v_pk_add_f32 {tm[4]}, {tm[2]}, {tm[3]}")
        a(f"v_pk_add_f32 {tm[5]}, {tm[2]}, {tm[3]} neg_lo:[0,1] neg_hi:[0,1]")
        a(f"v_cvt_pk_bf16_f32 {out[0][e]}, {tm[4][0]}, {tm[4][1]}\nv_cvt_pk_bf16_f32 {out[1][e]}, {tm[5][1]}, -{tm[5][0]}")
    a("s_branch K2_mide\nK2_mid0:")
    for e in range(8):
        m1 = cmul(tm[2], acc[0][2*e:2*e+2], Wf[0][2*e:2*e+2]); m2 = cmul(tm[3], acc[1][2*e:2*e+2], Wf[1][2*e:2*e+2])
        a("\n".join([m1[0], m2[0], m1[1], m2[1]]))
        a(f"v_cvt_pk_bf16_f32 {out[0][e]}, {tm[2][0]}, {tm[2][1]}\nv_cvt_pk_bf16_f32 {out[1][e]}, {tm[3][0]}, {tm[3][1]}")
    a("K2_mide:")
    ST(3, 1)
    for i in range(16): a(f"v_cndmask_b32 {DAT[48+i]}, 0, {DAT[48+i]}, vcc")
    a(f"""
    v_add_u32 {vA1}, {XA_OFF}, {vL16}
    s_lshl_b32 {sT0}, {sW}, 11
    v_add_u32 {vA0}, {sT0}, {vA1}
    """)
    for sg in range(2):
        for e in range(2): a(f"ds_write_b128 {vA0}, {out[sg][4*e:4*e+4]} offset:{8192*sg + 1024*e}")
    a(f"""
    v_mov_b32 {vT0}, {CNT_OFF}
    v_mov_b32 {vT1}, 1
    s_mov_b64 exec, 1
    ds_add_u32 {vT0}, {vT1}
    s_mov_b64 exec, -1
    K2_xw:
    ds_read_b32 {vT1}, {vT0}
    s_waitcnt lgkmcnt(0)
    v_cmp_gt_u32 vcc, 4, {vT1}
    s_cbranch_vccnz K2_xw
    """)
    ST(4, 1)
    rd = [[f"ds_read_b128 {fr(sg, s)}, {vA1} offset:{8192*sg + 1024*s}" for sg in range(2)] for s in range(8)]
    for s in range(6):
        for l in rd[s]: a(l)
    for s in range(8):
        a(f"s_waitcnt lgkmcnt({2*min(5, 7-s)})")
        for sg in range(2): a(f"{MF32} {acc[sg]}, {fr(sg, s)}, {TAB[4*s:4*s+4]}, {acc[sg] if s else 0}")
        if s + 6 < 8:
            for l in rd[s+6]: a(l)
    a(f"""
    v_lshrrev_b32 {vT0}, 1, {vM}
    s_lshl_b32 {sT0}, {sW}, 4
    v_add_u32 {vT2}, {sT0}, {vT0}                 ; n2
    v_lshlrev_b32 {vA0}, 8, {vT2}
    v_and_b32 {vT0}, 1, {vM}
    v_lshl_add_u32 {vT1}, {vH}, 1, {vT0}
    s_lshr_b32 {sT0}, {sKap}, 1
    s_and_b32 {sT0}, {sT0}, 2
    v_xor_b32 {vT1}, {sT0}, {vT1}
    v_and_b32 {vA1}, 6, {vM}
    v_xor_b32 {vT1}, {vT1}, {vA1}
    v_lshl_add_u32 {vA0}, {vT1}, 4, {vA0}
    v_add_u32 {vA0}, {VA_OFF}, {vA0}
    v_xor_b32 {vA1}, 64, {vA0}
    s_cmp_lg_u32 {sKap}, 0
    s_cbranch_scc1 K2_norot
    v_cvt_f32_u32 {vT2}, {vT2}
    v_mul_f32 {vT2}, {fhex(1/128)}, {vT2}
    v_lshlrev_b32 {vT0}, 31, {vT0}
    v_cos_f32 {vStep}, {vT2}
    v_sin_f32 {vBase}, -{vT2}
    s_nop 0
    v_xor_b32 {vBase}, {vT0}, {vBase}
    """)
    for i in range(16): a(f"v_mul_f32 {DAT[i]}, {acc[1][i]}, {vStep}")
    for i in range(16): a(f"v_fmac_f32_dpp {DAT[i]}, {acc[1][i]}, {vBase} quad_perm:[1,0,3,2] row_mask:0xf bank_mask:0xf")
    for i in range(16): a(f"v_mov_b32 {acc[1][i]}, {DAT[i]}")
    a("K2_norot:")
    ST(5, 1)
    for sg in range(2):
        for i in range(8): a(f"v_cvt_pk_bf16_f32 {acc[sg][i]}, {acc[sg][2*i]}, {acc[sg][2*i+1]}")
        for p in range(2): a(f"ds_write_b128 {vA1 if sg else vA0}, {acc[sg][4*p:4*p+4]} offset:{128*p}")
    a("K2_t2done:")
    ST(6, 1)
    ST(3)
    a(f"""
    ; G2 addresses
    v_lshrrev_b32 {vT0}, 2, {vR16}
    v_and_b32 {vT1}, 1, {vG}
    v_lshl_add_u32 {vT0}, {vT1}, 2, {vT0}
    v_lshl_add_u32 {vT0}, {vH}, 4, {vT0}
    v_mul_u32_u24 {vT0}, 160, {vT0}
    v_and_b32 {vT1}, 3, {vL}
    v_lshl_add_u32 {vT0}, {vT1}, 3, {vT0}
    s_mul_i32 {sT0}, {sSg}, 15360
    v_add_u32 {vA0}, {sT0}, {vT0}
    s_lshl_b32 {sT0}, {sNu}, 10
    s_add_u32 {sT0}, {sT0}, 30720
    v_add_u32 {vA1}, {sT0}, {vL16}
    """)
    a("s_waitcnt lgkmcnt(0)")
    bH = [[BUF[28*b+4*r:28*b+4*r+4] for r in range(2)] for b in range(2)]
    bW = [[BUF[28*b+8+4*t:28*b+12+4*t] for t in range(5)] for b in range(2)]
    def reads(ks, b):
        o = [f"ds_read_b128 {bH[b][r]}, {vA1} offset:{6144*r + 2048*ks}" for r in range(2)]
        return o + [f"ds_read_b64_tr_b16 {bW[b][t][2*e:2*e+2]}, {vA0} offset:{(32*ks+8*e)*160 + 32*t}" for t in range(5) for e in range(2)]
    def mm(b, z=False): return [f"{MF16} {(KEEP if r else SEND)[4*t:4*t+4]}, {bW[b][t]}, {bH[b][r]}, {0 if z else (KEEP if r else SEND)[4*t:4*t+4]}" for t in range(5) for r in range(2)]
    def rgen():
        sc = 2.0 / (2048 * 640)
        a(f"""
        v_lshlrev_b32 {vT0}, 6, {vR16}
        s_lshl_b32 {sT0}, {sNu}, 10
        s_add_u32 {sT0}, {sT0}, {sNk}
        v_add_u32 {vT0}, {sT0}, {vT0}
        v_cvt_f32_u32 {vStep}, {vT0}
        v_mul_f32 {vStep}, {fhex(1/2048)}, {vStep}
        v_lshlrev_b32 {vT1}, 1, {vG}
        v_cvt_f32_u32 {vT1}, {vT1}
        v_mul_f32 {vBase}, {vT1}, {vStep}
        v_cmp_eq_u32 vcc, 0, {vG}
        """)
        for i in range(4):
            o = 8 * (i // 2) + (i % 2); cur = TAB[2*i:2*i+2]
            if o == 0: a(f"v_cos_f32 {cur[0]}, {vBase}\nv_sin_f32 {cur[1]}, -{vBase}")
            else: a(f"v_fmamk_f32 {cur[1]}, {vStep}, {fhex(o)}, {vBase}\nv_cos_f32 {cur[0]}, {cur[1]}\nv_sin_f32 {cur[1]}, -{cur[1]}")
        a(f"""
        v_lshlrev_b32 {vT0}, 31, {vR16}
        v_or_b32 {vT0}, 1.0, {vT0}
        v_cndmask_b32 {TAB[1]}, {TAB[1]}, {vT0}, vcc
        s_mul_i32 {sT0}, {sSg}, 0x80008000
        """)
        for i in range(8): a(f"v_mul_f32 {TAB[i]}, {fhex(sc)}, {TAB[i]}")
        for i in range(4): a(f"v_cvt_pk_bf16_f32 {Rf[i]}, {TAB[2*i]}, {TAB[2*i+1]}\nv_xor_b32 {Rf[4+i]}, {sT0}, {Rf[i]}")
        a(f"""
        v_add_u32 {vT0}, {vR16}, {vG}
        v_cvt_f32_u32 {vT0}, {vT0}
        v_mul_f32 {vT0}, {fhex(0.25)}, {vT0}
        v_cos_f32 {vT0}, {vT0}
        s_cmp_eq_u32 {sW}, 2
        s_cselect_b32 vcc_lo, -1, 0
        s_mov_b32 vcc_hi, 0
        v_cvt_pk_bf16_f32 {vT0}, {vT0}, 0
        v_cndmask_b32 {G10[0]}, 0, {vT0}, vcc
        v_mov_b32 {G10[1]}, 0
        v_mov_b32 {G10[2]}, 0
        v_mov_b32 {G10[3]}, 0
        """)
    ST(4)
    R2 = [2]*6 + [0]*4
    for c in range(9):
        a(".p2align 3\ns_barrier\ns_nop 0")
        up = [f"v_add_u32 {v}, {(SLOT if c % 3 < 2 else -2*SLOT) & 0xffffffff}, {v}" for v in (vA0, vA1)]
        for l in reads(0, 0): a(l)
        a("s_waitcnt lgkmcnt(0)\ns_nop 0")
        for l in weave(mm(0, c == 0), (reads(1, 1), R2)): a(l)
        a("s_waitcnt lgkmcnt(0)\ns_nop 0")
        for l in weave(mm(1), (reads(2, 0), R2), (up, [0]*8 + [1, 1])): a(l)
        a("s_waitcnt lgkmcnt(0)\ns_nop 0")
        for l in mm(0): a(l)
        if c in GSCHED: ggen(GSCHED[c], TAB)
        if c == RSCHED: rgen()
    ST(5)
    a.srd_off(r0, pWS, WS_Z, Z_BYTES)
    a.srd_off(r1, pWS, WS_FL, FL_BYTES)
    a(f"""
    s_lshl_b32 {sT0}, s2, 2
    s_add_u32 {sT0}, {sT0}, {sW}
    s_mul_i32 {sT0}, {sT0}, 3072
    v_lshlrev_b32 {vT2}, 3, {vL}
    v_lshrrev_b32 {vT0}, 1, {vR16}
    v_lshlrev_b32 {vT0}, 7, {vT0}
    v_lshrrev_b32 {vT1}, 2, {vR16}
    v_and_b32 {vT1}, 2, {vT1}
    v_xor_b32 {vT1}, {vT1}, {vG}
    v_lshl_add_u32 {vT0}, {vT1}, 4, {vT0}
    v_and_b32 {vT1}, 1, {vR16}
    v_lshl_add_u32 {vA1}, {vT1}, 6, {vT0}
    s_mul_i32 {sT1}, {sNu}, 11
    s_mul_i32 {sT2}, {sSg}, 5
    s_add_u32 {sT1}, {sT1}, {sT2}
    s_lshl_b32 {sT1}, {sT1}, 11
    v_add_u32 {vA0}, {sT1}, {vA1}
    """)
    for i in range(10): a(f"v_cvt_pk_bf16_f32 {SEND[i]}, {SEND[2*i]}, {SEND[2*i+1]}")
    a(f"""
    buffer_store_dwordx4 {SEND[0:4]}, {vL16}, {r0}, {sT0} offen sc1
    buffer_store_dwordx4 {SEND[4:8]}, {vL16}, {r0}, {sT0} offen offset:1024 sc1
    buffer_store_dwordx2 {SEND[8:10]}, {vT2}, {r0}, {sT0} offen offset:2048 sc1
    s_barrier
    """)
    assert TAB.base == SEND.base + 20
    A3 = Reg('v', SEND.base + 12, 40)
    a3 = lambda t, rho: A3[8*t+4*rho:8*t+4*rho+4]
    pf = lambda w, rho: BUF[8*w+4*rho:8*w+4*rho+4]
    for w in range(6):
        for rho in range(2): a(f"ds_read_b128 {pf(w, rho)}, {vA0 if w < 5 else vA1} offset:{(2048*w if w < 5 else 20480) + 1024*rho}")
    a(f"""
    s_lshl_b32 {sT0}, s2, 9
    s_lshl_b32 {sT1}, {sW}, 7
    s_add_u32 {sT0}, {sT0}, {sT1}
    v_mov_b32 {vT0}, {sT0}
    v_mov_b32 {vT1}, 1
    """)
    for w in range(6):
        a(f"s_waitcnt lgkmcnt({2*(5-w)})")
        for t in range(5):
            for rho in range(2): a(f"{MF16} {a3(t, rho)}, {pf(w, rho)}, {G[20*t+4*w:20*t+4*w+4] if w < 5 else G10}, {a3(t, rho) if w else 0}")
        if w == 4: a(f"s_waitcnt vmcnt(0)\ns_mov_b64 exec, 1\nbuffer_store_dword {vT1}, {vT0}, {r1}, 0 offen sc1\ns_mov_b64 exec, -1")
    a(f"""
    s_mul_i32 {sT0}, {sW}, 5120
    v_add_u32 {vA1}, {QX_OFF}, {vL16}
    v_add_u32 {vA0}, {sT0}, {vA1}
    """)
    for t in range(5):
        for i in range(4): a(f"v_cvt_pk_bf16_f32 {A3[8*t+i]}, {A3[8*t+2*i]}, {A3[8*t+2*i+1]}")
        a(f"ds_write_b128 {vA0}, {A3[8*t:8*t+4]} offset:{1024*t}")
    a("s_waitcnt lgkmcnt(0)\ns_barrier")
    ST(6)
    qf = lambda i: G[4*i:4*i+4]
    for i in range(14): a(f"ds_read_b128 {qf(i)}, {vA1} offset:{1024*i}")
    for i in range(20):
        a(f"s_waitcnt lgkmcnt({min(13, 19-i)})")
        a(f"{MF16} {KEEP[4*(i%5):4*(i%5)+4]}, {qf(i)}, {Rf[4*((i//5)%2):4*((i//5)%2)+4]}, {KEEP[4*(i%5):4*(i%5)+4]}")
        if i + 14 < 20: a(f"ds_read_b128 {qf(i+14)}, {vA1} offset:{1024*(i+14)}")
    a(f"""
    s_mul_i32 {sT0}, {sNu}, {16*320}
    s_mul_i32 {sT1}, {sSg}, 160
    s_add_u32 {sT1}, {sT1}, {XL_OFF}
    v_lshl_add_u32 {vA1}, {vG}, 3, {sT1}
    v_mul_u32_u24 {vA0}, 320, {vR16}
    v_add3_u32 {vA0}, {vA0}, {vA1}, {sT0}
    """)
    for t in range(5): a(f"ds_read_b64 {BUF[16+2*t:18+2*t]}, {vA0} offset:{32*t}\nds_read_b64 {BUF[26+2*t:28+2*t]}, {vA1} offset:{10240 + 32*t}")
    for t in range(5):
        a(f"s_waitcnt lgkmcnt({8-2*t})")
        for k in range(2):
            for src in (BUF[16+2*t+k], BUF[26+2*t+k]):
                a(f"""v_lshlrev_b32 {BUF[12]}, 16, {src}
                v_and_b32 {BUF[13]}, 0xffff0000, {src}
                v_pk_add_f32 {KEEP[4*t+2*k:4*t+2*k+2]}, {KEEP[4*t+2*k:4*t+2*k+2]}, {BUF[12:14]}""")
    a(f"""
    s_mul_i32 {sT0}, {sW}, 3072
    s_add_u32 {sT0}, {sT0}, {RECV_OFF}
    v_add_u32 {vA0}, {sT0}, {vL16}
    v_add_u32 {vA1}, {sT0}, {vT2}
    """)
    ST(7)
    a(f"""
    s_barrier
    ds_read_b128 {BUF[0:4]}, {vA0}
    ds_read_b128 {BUF[4:8]}, {vA0} offset:1024
    ds_read_b64 {BUF[8:10]}, {vA1} offset:2048
    s_waitcnt lgkmcnt(0)
    """)
    for t in range(5):
        for k in range(2):
            a(f"""v_lshlrev_b32 {BUF[12+2*k]}, 16, {BUF[2*t+k]}
            v_and_b32 {BUF[13+2*k]}, 0xffff0000, {BUF[2*t+k]}
            v_pk_add_f32 {KEEP[4*t+2*k:4*t+2*k+2]}, {KEEP[4*t+2*k:4*t+2*k+2]}, {BUF[12+2*k:14+2*k]}""")
        a(f"""v_cvt_pk_bf16_f32 {KEEP[4*t]}, {KEEP[4*t]}, {KEEP[4*t+1]}
        v_cvt_pk_bf16_f32 {KEEP[4*t+1]}, {KEEP[4*t+2]}, {KEEP[4*t+3]}
        buffer_store_dwordx2 {KEEP[4*t:4*t+2]}, {vOffX}, {r4}, {sXo} offen offset:{32*t}""")
    ST.flush(pWS, sW)
    a("K2_end:\ns_endpgm")
    return a.text(), max(hi, V.hi)

def gen_both(stamp=False, k1kw={}, k2kw={}, head=""):
    t1, n1 = gen_k1(stamp, **k1kw); t2, n2 = gen_k2(stamp, **k2kw)
    return module([("k1_kernel", t1, n1, None), ("k2_kernel", t2, n2, None)],
                  [("k1_kernel", 256, 512, K1_LDS), ("k2_kernel", 256, 512, K2_LDS)], extra_text="code_end:\n", head=head)
if __name__ == "__main__":
    import sys
    print("vgprs", gen_k2()[1], "lds", K2_LDS)
    open("both.s", "w").write(gen_both(k1kw=dict(rotmode=(2,20,5,10))))
    if len(sys.argv) > 1:
        head = open("cdna_kernels/" + NAME + ".s.ref").read().split("; Override launch")[0]
        open("cdna_kernels/" + NAME + ".s", "w").write(gen_both(k1kw=dict(rotmode=(2,20,5,10)), head=head))
```

```python
from k2 import *
def pad_first():
    return """    s_cmp_lg_u32 s2, 0
    s_cbranch_scc1 PF_skip
    s_memrealtime s[90:91]
    s_load_dwordx2 s[92:93], s[0:1], 80
    s_waitcnt lgkmcnt(0)
    s_add_u32 s92, s92, 0x3000000
    s_addc_u32 s93, s93, 0
    s_mov_b32 s94, 64
    s_mov_b32 s95, 0x20000
    v_mov_b32 v1, s90
    v_mov_b32 v2, 0
    buffer_store_dword v1, v2, s[92:95], 0 offen
PF_skip:
"""
def k3(mode, n):
    if mode == 'pad':
        return f"""    s_load_dwordx2 s[4:5], s[0:1], 80
    s_waitcnt lgkmcnt(0)
    s_add_u32 s4, s4, 0x3000000
    s_addc_u32 s5, s5, 0
    s_load_dword s6, s[4:5], 0
    s_mov_b32 s10, 0
K3_l:
    s_memrealtime s[8:9]
    s_waitcnt lgkmcnt(0)
    s_add_u32 s10, s10, 1
    s_cmp_ge_u32 s10, 100000
    s_cbranch_scc1 K3_e
    s_sub_u32 s8, s8, s6
    s_cmp_lt_u32 s8, {n}
    s_cbranch_scc1 K3_l
K3_e:
    s_endpgm
"""
    return f"""    s_memtime s[6:7]
K3_l:
    s_memtime s[8:9]
    s_waitcnt lgkmcnt(0)
    s_sub_u32 s8, s8, s6
    s_cmp_lt_u32 s8, {n}
    s_cbranch_scc1 K3_l
    s_endpgm
"""
def gen(mode, n, upto=2):
    t1, n1 = gen_k1(rotmode=(2,20,5,10)); t2, n2 = gen_k2()
    if mode == 'pad': t1 = pad_first() + t1
    ls = [("k1_kernel", 256, 512, K1_LDS), ("k2_kernel", 256, 512, K2_LDS)]
    ls.insert(upto, ("k3_kernel", 1, 64, 0))
    return module([("k1_kernel", t1, n1, None), ("k2_kernel", t2, n2, None), ("k3_kernel", k3(mode, n), 8, None)], ls, extra_text="code_end:\n")
open("pr3_pad50.s", "w").write(gen('pad', 5000))
open("pr3_padmid.s", "w").write(gen('pad', 3000, 1))
open("pr3_cyc0.s", "w").write(gen('cyc', 1))
open("pr3_cyc40k.s", "w").write(gen('cyc', 40000))
```

```python
from asmlib import *
import math
WS_H, WS_V, WS_W2T, WS_FL, WS_P, WS_Z = 0, 0x6C0000, 0x980000, 0xBA0000, 0xBE0000, 0xEA0000
H_BYTES = 64*54*2048
V_ROW = 5632; V_BYTES = 16*32*V_ROW
P_GRP = 2*11*2048; P_BYTES = 64*P_GRP
W2T_BYTES = 1728*1280
WP_BYTES = 2048*1408
FLH_OFF = (176 + 8)*128; FLC_OFF = FLH_OFF + 1024*128; FLE_OFF = FLC_OFF + 256*128; FF_BYTES = FLE_OFF + 8*128
TAG_STEP = 0x9E3779B9
FL_BYTES = (176 + 8)*128
X_BYTES, W1_BYTES, W_BYTES, W2_BYTES = 2048*1280, 640*3456, 2048*642, 1728*1280
NSLOT = 4
RS_OFF = NSLOT*32768; CS_OFF = RS_OFF + 4096; RSTD_OFF = CS_OFF + 512; B1_OFF = RSTD_OFF + 512; RTAB_OFF = B1_OFF + 256
F4_OFF = RTAB_OFF + 16384
K1_LDS = F4_OFF + 8192
MF32 = "v_mfma_f32_32x32x16_bf16"; MF16 = "v_mfma_f32_16x16x32_bf16"; MF4 = "v_mfma_f32_4x4x4_16b_bf16"
SC = "sc1"
SPIN_MAX = 1 << 17

def weave(main, *fills):
    out = []; fl = [(list(f), c) for f, c in fills]
    for i, m in enumerate(main):
        out.append(m)
        for f, c in fl:
            for _ in range(c[i]):
                if f: out.append(f.pop(0))
    for f, c in fl: out += f
    return out

def row_stats_finish(a, s1, s2, tmp, mb, den):
    a(f"""
    v_mul_f32 {s1}, {fhex(1/640)}, {s1}
    v_mul_f32 {s2}, {fhex(1/640)}, {s2}
    v_fma_f32 {s2}, -{s1}, {s1}, {s2}
    v_max_f32 {s2}, 0, {s2}
    v_cvt_pk_bf16_f32 {tmp}, {s1}, {s2}
    v_lshlrev_b32 {mb}, 16, {tmp}
    v_and_b32 {s2}, 0xffff0000, {tmp}
    v_add_f32 {s2}, {fhex(1e-5)}, {s2}
    v_cvt_pk_bf16_f32 {tmp}, {s2}, {s2}
    v_and_b32 {s2}, 0xffff0000, {tmp}
    v_sqrt_f32 {s2}, {s2}
    s_nop 0
    v_cvt_pk_bf16_f32 {tmp}, {s2}, {s2}
    v_and_b32 {den}, 0xffff0000, {tmp}
    """)

def gen_k1(stamp=False, rotmode=2, code_bytes='code_end-k1_kernel', dbg='', hprio=1, fused=False, local=0, tpos=8, p1st=False):
    a = Asm("K1"); ST = Stamps(a, 0, stamp)
    if fused and stamp and not p1st:
        ST0 = ST
        class _S:
            init = ST0.init
            def flush(self, *x): pass
            def __call__(self, k):
                if k == 0: ST0(0)
        ST = _S()
    S = Alloc('s', 3, 68); V = Alloc('v', 1, 256)
    sTag = Reg('s', 70, 1); kname = NAME + '_kernel' if fused else 'k1_kernel'
    if fused: code_bytes = 'code_end-' + kname
    pX = S(2); pWr = S(4); pW1 = S(4); pW2 = S(2); pWS = S(2)
    r0 = S(4); r1 = S(4); r2 = S(4); r3 = S(4)
    sW = Reg('s', 71, 1)
    sQ, sHf, sRp, sRb, sU0, sU1, sUnit, sMixed, sC, sSlot, sT0, sT1, sT2, sCk, sSoA, sSoB0 = [S() for _ in range(16)]
    sMask = S(2)
    vL = V(); vN1 = V(); vH = V(); vT0 = V(); vT1 = V(); vT2 = V(); vPf = V()
    a("s_cmp_lt_u32 s2, 256\ns_cbranch_scc1 K1_go\ns_endpgm\nK1_go:")
    ST(0); ST.init()
    a(f"""
    s_load_dwordx2 {pX}, s[0:1], 0
    s_load_dwordx4 {pW1}, s[0:1], 32
    s_load_dwordx2 {pWS}, s[0:1], 80
    s_load_dwordx4 {pWr}, s[0:1], 8
    s_load_dwordx2 {pW2}, s[0:1], 48
    s_getpc_b64 {r3[0:2]}
    K1_pc:
    s_sub_u32 {r3[0]}, {r3[0]}, K1_pc-{kname}
    s_subb_u32 {r3[1]}, {r3[1]}, 0
    s_mov_b32 {r3[2]}, {code_bytes}
    s_mov_b32 {r3[3]}, 0x20000
    s_lshr_b32 {sT0}, s2, 3
    s_lshl_b32 {sT0}, {sT0}, 7
    v_lshl_add_u32 {vT0}, v0, 12, {sT0}
    buffer_load_dword {vPf}, {vT0}, {r3}, 0 offen
    v_lshrrev_b32 {vT0}, 6, v0
    v_and_b32 {vL}, 63, v0
    v_readfirstlane_b32 {sW}, {vT0}
    v_and_b32 {vN1}, 31, v0
    v_lshrrev_b32 {vH}, 5, {vL}
    s_and_b32 {sT0}, s2, 1             ; j
    s_bfe_u32 {sRb}, s2, 0x20001       ; i
    s_lshl_b32 {sRb}, {sRb}, 2
    s_bfe_u32 {sT1}, s2, 0x20003       ; rbl
    s_add_u32 {sRb}, {sRb}, {sT1}
    s_lshr_b32 {sT2}, s2, 5            ; cb
    """)
    if rotmode == 0: a(f"s_mov_b32 {sCk}, 0")
    elif rotmode == 1:
        a(f"s_add_u32 {sCk}, {sT2}, {sT1}\ns_and_b32 {sCk}, {sCk}, 3\ns_mul_i32 {sCk}, {sCk}, 5\ns_lshr_b32 {sCk}, {sCk}, 1")
    elif rotmode == 2:
        a(f"s_add_u32 {sCk}, {sT2}, {sT1}\ns_and_b32 {sCk}, {sCk}, 1\ns_mul_i32 {sCk}, {sCk}, 5")
    elif rotmode == 3:
        a(f"s_lshl_b32 {sCk}, {sT1}, 1\ns_add_u32 {sCk}, {sCk}, {sT2}\ns_and_b32 {sCk}, {sCk}, 7\ns_mul_i32 {sCk}, {sCk}, 5\ns_lshr_b32 {sCk}, {sCk}, 2")
    elif isinstance(rotmode, tuple):
        npz, A_, B_, C_ = rotmode
        a(f"""s_add_u32 {sCk}, {sT2}, {sT1}
        s_and_b32 {sCk}, {sCk}, {npz-1}
        s_mul_i32 {sCk}, {sCk}, {A_}
        s_bfe_u32 {sC}, s2, 0x20001
        s_mul_i32 {sC}, {sC}, {B_}
        s_add_u32 {sCk}, {sCk}, {sC}
        s_mul_i32 {sC}, {sT0}, {C_}
        s_add_u32 {sCk}, {sCk}, {sC}
        s_lshr_b32 {sCk}, {sCk}, 2
        s_mul_i32 {sC}, {sCk}, 26
        s_lshr_b32 {sC}, {sC}, 8
        s_mul_i32 {sC}, {sC}, 10
        s_sub_u32 {sCk}, {sCk}, {sC}""")
    elif rotmode == 4:
        a(f"s_add_u32 {sCk}, {sT2}, {sT1}\ns_mul_i32 {sC}, {sCk}, 86\ns_lshr_b32 {sC}, {sC}, 8\ns_mul_i32 {sC}, {sC}, 3\ns_sub_u32 {sCk}, {sCk}, {sC}\ns_mul_i32 {sCk}, {sCk}, 7\ns_lshr_b32 {sCk}, {sCk}, 1")
    a(f"""
    s_mul_i32 {sU0}, {sT0}, 14
    s_sub_u32 {sC}, 6, {sT0}
    s_cmp_ge_u32 {sT2}, {sC}
    s_cselect_b32 {sMixed}, 1, 0
    s_cselect_b32 {sT1}, {sC}, {sT2}
    s_add_u32 {sU0}, {sU0}, {sT2}
    s_add_u32 {sU0}, {sU0}, {sT1}
    s_add_u32 {sU1}, {sU0}, 1
    s_lshl_b32 {sT0}, {sT0}, 1
    s_add_u32 {sT0}, {sT0}, {sT2}
    s_sub_u32 {sT0}, {sT0}, {sC}
    s_cmp_eq_u32 {sMixed}, 1
    s_cselect_b32 {sU1}, {sT0}, {sU1}
    s_mov_b32 s69, 0x7f000000
    s_mov_b32 s68, 0
    s_and_b32 {sQ}, {sW}, 3
    s_cmp_lt_u32 {sW}, 4
    s_cbranch_scc1 K1_comp
    """)
    mark = V.mark()
    vOffA = V(4); vOffB = V(); vU = V(4); vZ = V(4); sMsk = S(); sMA = S(); sMB = S()
    c0 = -2 * math.sqrt(2 / math.pi) * math.log2(math.e); c1 = c0 * 0.044715
    if hprio: a(f"s_setprio {hprio}")
    a(f"""
    v_lshrrev_b32 {vT0}, 3, {vL}
    s_mov_b32 {sT1}, {64*1280}
    v_mul_lo_u32 {vT0}, {vT0}, {sT1}
    v_lshrrev_b32 {vT1}, 4, {vL}
    v_and_b32 {vT2}, 7, {vL}
    v_xor_b32 {vT1}, {vT1}, {vT2}
    v_lshl_add_u32 {vOffA[0]}, {vT1}, 4, {vT0}
    v_xor_b32 {vT0}, 64, {vOffA[0]}
    v_add_u32 {vOffA[1]}, {8*64*1280 - 1024}, {vT0}
    v_add_u32 {vOffA[2]}, {16*64*1280 - 2048}, {vOffA[0]}
    v_add_u32 {vOffA[3]}, {24*64*1280 - 3072}, {vT0}
    s_lshl_b32 {sT0}, {sRb}, 2
    s_add_u32 {sT0}, {sT0}, {sQ}
    s_mul_i32 {sSoA}, {sT0}, 1280
    v_lshrrev_b32 {vT0}, 3, {vL}
    v_mul_u32_u24 {vT0}, 3456, {vT0}
    v_lshrrev_b32 {vT1}, 2, {vL}
    v_and_b32 {vT1}, 4, {vT1}
    v_xor_b32 {vT1}, {vT1}, {vT2}
    v_lshl_add_u32 {vOffB}, {vT1}, 4, {vT0}
    s_mul_i32 {sT0}, {sQ}, {16*3456}
    s_lshl_b32 {sSoB0}, {sU0}, 7
    s_add_u32 {sSoB0}, {sSoB0}, {sT0}
    s_mov_b32 {sSlot}, 0
    s_waitcnt lgkmcnt(0)
    """)
    ST(1)
    a.srd(r0, pX[0], pX[1], X_BYTES)
    a.srd(r1, pW1[0], pW1[1], W1_BYTES)
    a.srd(r2, pW1[2], pW1[3], 1728*2)
    a(f"""
    s_lshl_b32 {sMA}, {sQ}, 12
    s_lshl_b32 {sMB}, {sQ}, 11
    s_add_u32 {sMB}, {sMB}, 16384
    s_lshl_b32 {sT0}, {sCk}, 7
    s_add_u32 {sSoA}, {sSoA}, {sT0}
    s_mul_i32 {sT0}, {sCk}, {64*3456}
    s_add_u32 {sSoB0}, {sSoB0}, {sT0}
    """)
    def issue(mixed):
        g = [[f"s_add_u32 m0, {sMA}, {sSlot}", f"s_add_u32 {sT1}, {sSoB0}, {8*3456 - 1024}"], [], [], []]
        for i in range(4): g[i].append(f"buffer_load_dwordx4 {vOffA[i]}, {r0}, {sSoA} offen offset:{1024*i} lds")
        g.append([f"s_add_u32 m0, {sMB}, {sSlot}", f"s_add_u32 {sCk}, {sCk}, 1", f"buffer_load_dwordx4 {vOffB}, {r1}, {sSoB0} offen lds"])
        g.append([f"buffer_load_dwordx4 {vOffB}, {r1}, {sT1} offen offset:1024 lds"])
        if not mixed:
            g.append([f"s_add_u32 m0, m0, {8192 - 128}", "s_nop 0", f"buffer_load_dwordx4 {vOffB}, {r1}, {sSoB0} offen offset:128 lds"])
            g.append([f"buffer_load_dwordx4 {vOffB}, {r1}, {sT1} offen offset:{1024+128} lds"])
        return g
    def advance():
        a(f"""
        s_cmp_eq_u32 {sCk}, 10
        s_cselect_b32 {sT0}, -9, 1
        s_lshl_b32 {sT1}, {sT0}, 7
        s_add_u32 {sSoA}, {sSoA}, {sT1}
        s_mul_i32 {sT0}, {sT0}, {64*3456}
        s_add_u32 {sSoB0}, {sSoB0}, {sT0}
        s_add_u32 {sSlot}, {sSlot}, 0x8000
        s_and_b32 {sSlot}, {sSlot}, 0x1ffff
        """)
    def hiter(mixed, fstep, b):
        n = 6 if mixed else 8
        a(f"s_waitcnt vmcnt({n}) lgkmcnt(0)\ns_barrier")
        v = fstep or []
        while v and v[0].startswith("ds_write"): a(v.pop(0))
        per = -(-len(v) // n)
        for i, g in enumerate(issue(mixed)):
            for l in g + v[per*i:per*(i+1)]: a(l)
        advance()
    def tagload(R):
        if fused: a(f"s_add_u32 {R[0]}, {pWS[0]}, {WS_FL + FF_BYTES}\ns_addc_u32 {R[1]}, {pWS[1]}, 0\ns_load_dword {sTag}, {R[0:2]}, 0")
    def hinit():
        a(f"s_mov_b32 {sC}, 0"); tagload(r3)
    a(f"""
    s_mov_b32 m0, {B1_OFF}
    s_lshl_b32 {sT0}, {sU0}, 7
    v_lshl_add_u32 {vT0}, {vL}, 2, {sT0}
    buffer_load_dword {vT0}, {r2}, 0 offen lds
    """)
    if fused:
        cp = V(12); vCd = V(); vTg = V(); vFl = V(4); vFa = V(4); sWv = S(); sP = S(); sD1 = sC; wa = Reg('v', 252, 4)
        a(f"""
        s_mov_b32 {r2[0]}, {r1[0]}
        s_mov_b32 {r2[1]}, {r1[1]}
        s_cmp_eq_u32 {sMixed}, 1
        s_cselect_b32 {r2[2]}, 0, {r1[2]}
        s_cselect_b32 {sD1}, 0x30000, 0
        """)
        def chunk():
            for g in issue(True):
                for l in g: a(l)
            a(f"s_add_u32 {sT0}, m0, {8192 - 128}\ns_max_u32 m0, {sT0}, {sD1}\ns_nop 0\nbuffer_load_dwordx4 {vOffB}, {r2}, {sSoB0} offen offset:128 lds\nbuffer_load_dwordx4 {vOffB}, {r2}, {sT1} offen offset:{1024+128} lds")
            advance()
        chunk(); chunk()
        tagload(r3)
        a.srd(r3, pW2[0], pW2[1], W2_BYTES)
        a(f"s_lshl_b32 {sWv}, s2, 2\ns_add_u32 {sWv}, {sWv}, {sQ}")
        for i in range(3):
            a(f"""
            s_add_u32 {sP}, {sWv}, {1024*i}
            s_mul_i32 {sT0}, {sP}, 7768
            s_lshr_b32 {sT0}, {sT0}, 21
            s_mul_i32 {sT1}, {sT0}, 270
            s_sub_u32 {sT1}, {sP}, {sT1}
            s_lshl_b32 {sT1}, {sT1}, 6
            v_add_u32 {vT0}, {sT1}, {vL}
            v_mul_u32_u24 {vT1}, 52429, {vT0}
            v_lshrrev_b32 {vT1}, 19, {vT1}
            v_mul_u32_u24 {vT1}, {1280-160}, {vT1}
            v_lshl_add_u32 {vT1}, {vT0}, 4, {vT1}
            s_mul_i32 {sT0}, {sT0}, 160
            s_cmp_ge_u32 {sP}, 2160
            s_cselect_b32 {r3[2]}, 0, {r3[2]}
            s_cselect_b32 {sT0}, 0, {sT0}
            buffer_load_dwordx4 {cp[4*i:4*i+4]}, {vT1}, {r3}, {sT0} offen
            """)
        a(f"s_lshl_b32 {sT0}, {sWv}, 10\nv_lshl_add_u32 {vCd}, {vL}, 4, {sT0}")
        waits = {0: 11, 1: 11, 2: 8, 3: 11, 4: 8, 5: 9, 6: 8, 7: 8}
        for c in range(8):
            a(f"s_waitcnt vmcnt({waits[c]}) lgkmcnt(0)\ns_barrier")
            if c == 2:
                a.srd_off(r3, pWS, WS_W2T, W2T_BYTES)
                for i in range(3):
                    a(f"buffer_store_dwordx4 {cp[4*i:4*i+4]}, {vCd}, {r3}, 0 offen sc1")
                    if i < 2: a(f"v_add_u32 {vCd}, {1024*1024}, {vCd}")
            if c == 4:
                a.srd_off(r3, pWS, WS_FL, FF_BYTES + 128)
                a(f"""
                s_add_u32 {sTag}, {sTag}, {TAG_STEP}
                s_lshl_b32 {sT0}, s2, 7
                s_add_u32 {sT0}, {sT0}, {FLC_OFF}
                s_cmp_lg_u32 {sQ}, 0
                s_cselect_b32 {sT0}, 0x7f000000, {sT0}
                v_mov_b32 {vT0}, {sT0}
                v_mov_b32 {vTg}, {sTag}
                s_mov_b64 exec, 1
                buffer_store_dword {vTg}, {vT0}, {r3}, 0 offen sc1
                s_mov_b64 exec, -1
                """)
            chunk()
            if c == 6:
                a(f"""
                s_and_b32 {sT0}, s2, 7
                s_lshl_b32 {sT0}, {sT0}, 7
                s_add_u32 {sT0}, {sT0}, {FLE_OFF}
                v_mov_b32 {vCd}, {sT0}
                s_lshr_b32 {sT0}, s2, 3
                s_lshl_b32 {sT0}, {sT0}, 2
                s_add_u32 {sT0}, {sT0}, {sQ}
                s_cmp_lg_u32 {sT0}, 124
                s_cbranch_scc1 K1_nocoll
                s_mov_b32 {sP}, 0
                v_lshlrev_b32 {vT0}, 7, {vL}
                """)
                for i in range(4): a(f"v_add_u32 {vFa[i]}, {FLC_OFF + 8192*i}, {vT0}")
                a("K1_coll:")
                for i in range(4): a(f"buffer_load_dword {vFl[i]}, {vFa[i]}, {r3}, 0 offen sc1")
                a(f"s_add_u32 {sP}, {sP}, 1\ns_waitcnt vmcnt(0)")
                for i in range(4): a(f"v_xor_b32 {vFl[i]}, {vFl[i]}, {vTg}")
                a(f"""
                v_or3_b32 {vFl[0]}, {vFl[0]}, {vFl[1]}, {vFl[2]}
                v_or_b32 {vFl[0]}, {vFl[0]}, {vFl[3]}
                v_cmp_ne_u32 vcc, 0, {vFl[0]}
                s_cmp_ge_u32 {sP}, {SPIN_MAX}
                s_cbranch_scc1 K1_pub
                s_cbranch_vccnz K1_coll
                K1_pub:
                s_mov_b64 exec, 1
                buffer_store_dword {vTg}, {vCd}, {r3}, 0 offen sc1
                s_mov_b64 exec, -1
                K1_nocoll:
                """)
        a.srd(r0, pWr[0], pWr[1], W_BYTES)
        a.srd(r1, pWr[2], pWr[3], W_BYTES)
        a(f"""
        s_and_b32 {sT0}, s2, 7
        s_lshl_b32 {sT0}, {sT0}, 1
        s_lshr_b32 {sT1}, {sQ}, 1
        s_add_u32 {sT0}, {sT0}, {sT1}
        s_sub_u32 {sT1}, 32, {sT0}
        s_cmp_eq_u32 {sT0}, 0
        s_cselect_b32 {sT1}, 16, {sT1}
        s_bitcmp1_b32 {sQ}, 0
        s_cselect_b32 {sT0}, {sT1}, {sT0}
        s_lshr_b32 {sT1}, s2, 3
        s_lshl_b32 {sT1}, {sT1}, 6
        s_add_u32 {sT0}, {sT0}, {sT1}
        s_mul_i32 {sT2}, {sT0}, 642
        v_and_b32 {vT0}, 7, {vL}
        v_min_u32 {vT0}, 5, {vT0}
        v_lshlrev_b32 {vT0}, 7, {vT0}
        v_bfe_u32 {vT1}, {vL}, 3, 1
        v_mul_u32_u24 {vT1}, {32*642}, {vT1}
        v_add_u32 {vT0}, {vT0}, {vT1}
        buffer_load_dword {wa[3]}, {vCd}, {r3}, 0 offen sc1
        buffer_load_ushort {wa[0]}, {vT0}, {r0}, {sT2} offen
        buffer_load_ushort {wa[1]}, {vT0}, {r1}, {sT2} offen
        s_branch K2_entry
        """)
    cut = len(a.lines); smk = S.mark()
    a(f"s_cmp_eq_u32 {sMixed}, 1\ns_cbranch_scc1 K1_hmix")
    for c in range(2):
        for g in issue(False):
            for l in g: a(l)
        advance()
    if stamp and 'T' in dbg:
        ST(4); a("s_waitcnt vmcnt(15)"); ST(5); a("s_waitcnt vmcnt(8)"); ST(6); a("s_waitcnt vmcnt(0)"); ST(7)
    hinit()
    a("K1_hploop:")
    hiter(False, None, 0)
    a(f"s_add_u32 {sC}, {sC}, 1\ns_cmp_lt_u32 {sC}, 8\ns_cbranch_scc1 K1_hploop\ns_branch K1_htail\nK1_hmix:")
    vBc = Reg('v', 252, 1); vBs = Reg('v', 253, 1)
    for c in range(2):
        for g in issue(True):
            for l in g: a(l)
        advance()
    hinit()
    a("K1_hmloop:")
    hiter(True, None, 0)
    a(f"s_add_u32 {sC}, {sC}, 1\ns_cmp_lt_u32 {sC}, 8\ns_cbranch_scc1 K1_hmloop")
    a(f"v_mov_b32 {vT0}, 0x7f000000\nbuffer_load_dword {vBc}, {vT0}, {r0}, 0 offen\nbuffer_load_dword {vBs}, {vT0}, {r0}, 0 offen")
    a("K1_htail:")
    ST(2)
    cp = V(12); wa = Reg('v', 252, 4) if fused else V(3); vI = V(); sWv = S(); sP = S()
    a.srd(r2, pW2[0], pW2[1], W2_BYTES)
    a.srd(r3, pWr[0], pWr[1], W_BYTES)
    a.srd(r1, pWr[2], pWr[3], W_BYTES)
    a.srd_off(r0, pWS, WS_FL, FL_BYTES + 128)
    a(f"""
    s_lshl_b32 {sWv}, s2, 2
    s_add_u32 {sWv}, {sWv}, {sQ}
    s_and_b32 {sT0}, s2, 7
    s_lshl_b32 {sT0}, {sT0}, 1
    s_lshr_b32 {sT1}, {sQ}, 1
    s_add_u32 {sT0}, {sT0}, {sT1}
    s_sub_u32 {sT1}, 32, {sT0}
    s_cmp_eq_u32 {sT0}, 0
    s_cselect_b32 {sT1}, 16, {sT1}
    s_bitcmp1_b32 {sQ}, 0
    s_cselect_b32 {sT0}, {sT1}, {sT0}
    s_lshr_b32 {sT1}, s2, 3
    s_lshl_b32 {sT1}, {sT1}, 6
    s_add_u32 {sT0}, {sT0}, {sT1}
    s_mul_i32 {sT2}, {sT0}, 642
    v_lshlrev_b32 {vI}, 4, {vL}
    v_and_b32 {vT0}, 7, {vL}
    v_min_u32 {vT0}, 5, {vT0}
    v_lshlrev_b32 {vT0}, 7, {vT0}
    v_bfe_u32 {vT1}, {vL}, 3, 1
    v_mul_u32_u24 {vT1}, {32*642}, {vT1}
    v_add_u32 {vT0}, {vT0}, {vT1}
    buffer_load_ushort {wa[0]}, {vT0}, {r3}, {sT2} offen
    buffer_load_ushort {wa[1]}, {vT0}, {r1}, {sT2} offen
    """)
    a(f"""
    s_cmp_eq_u32 {sWv}, {FL_BYTES // 1024}
    s_cselect_b32 {sT0}, {FL_BYTES}, -16
    v_mov_b32 {vT1}, {sT0}
    buffer_load_dword {wa[2]}, {vT1}, {r0}, 0 offen sc1
    """)
    for i in range(3):
        a(f"""
        s_add_u32 {sP}, {sWv}, {1024*i}
        s_mul_i32 {sT0}, {sP}, 7768
        s_lshr_b32 {sT0}, {sT0}, 21
        s_mul_i32 {sT1}, {sT0}, 270
        s_sub_u32 {sT1}, {sP}, {sT1}
        s_lshl_b32 {sT1}, {sT1}, 6
        v_add_u32 {vT0}, {sT1}, {vL}
        v_mul_u32_u24 {vT1}, 52429, {vT0}
        v_lshrrev_b32 {vT1}, 19, {vT1}
        v_mul_u32_u24 {vT1}, {1280-160}, {vT1}
        v_lshl_add_u32 {vT1}, {vT0}, 4, {vT1}
        s_mul_i32 {sT0}, {sT0}, 160
        s_cmp_ge_u32 {sP}, 2160
        s_cselect_b32 {r2[2]}, 0, {r2[2]}
        s_cselect_b32 {sT0}, 0, {sT0}
        buffer_load_dwordx4 {cp[4*i:4*i+4]}, {vT1}, {r2}, {sT0} offen
        """)
    a("s_waitcnt vmcnt(14) lgkmcnt(0)\ns_barrier\ns_waitcnt vmcnt(6)\ns_barrier")
    ST(3)
    a.srd_off(r2, pWS, WS_W2T, W2T_BYTES)
    for k in range(4): a(f"v_mov_b32 {vZ[k]}, 0")
    a(f"""
    s_lshl_b32 {sT0}, {sWv}, 10
    v_add_u32 {vT1}, {sT0}, {vI}
    s_barrier
    s_waitcnt vmcnt(0)
    s_cmp_eq_u32 {sWv}, {FL_BYTES // 1024}
    s_cselect_b32 {sT1}, -1, 0
    v_add_u32 {vZ[0]}, 1, {wa[2]}
    v_and_b32 {vZ[0]}, {sT1}, {vZ[0]}
    buffer_store_dwordx4 {vZ}, {vT1}, {r0}, 0 offen {SC}
    """)
    for i in range(3):
        a(f"buffer_store_dwordx4 {cp[4*i:4*i+4]}, {vT1}, {r2}, 0 offen {SC}")
        if i < 2: a(f"v_add_u32 {vT1}, {1024*1024}, {vT1}")
    if 'T' not in dbg: ST(4)
    ST.flush(pWS, sW)
    a("s_endpgm")
    if fused: del a.lines[cut:]; S.release(smk)
    hi = V.hi
    def finish(uoff=0):
        if not fused:
            ST.flush(pWS, sW); a("s_endpgm"); return
        a(f"""
        s_add_u32 {sTag}, {sTag}, {TAG_STEP}
        s_lshl_b32 s69, {sRb}, 1
        s_add_u32 s69, s69, {sRp}
        s_lshl_b32 s69, s69, 5
        s_add_u32 s69, s69, {sUnit}
        s_add_u32 s69, s69, {FLH_OFF // 128 + uoff}
        s_lshl_b32 s69, s69, 7
        """)
        ST.flush(pWS, sW, False)
        a("s_branch K2_entry")
    V.release(mark)
    vXs = [V(4), V(4)]; vS1 = V(4); vS2 = V(2); vSel = V(4); vU = V(4); vRs = V(); sMk2 = S(2)
    a(f"""
    K1_comp:
    s_and_b32 {sRp}, {sW}, 1
    s_lshr_b32 {sHf}, {sW}, 1
    s_cmp_eq_u32 {sHf}, 0
    s_cselect_b32 {sUnit}, {sU0}, {sU1}
    v_lshrrev_b32 {vT0}, 1, {vN1}
    v_and_b32 {vT0}, 7, {vT0}
    v_xor_b32 {vT0}, {vT0}, {vH}
    v_lshlrev_b32 {vT0}, 4, {vT0}
    v_lshl_add_u32 {vT0}, {vN1}, 7, {vT0}
    s_lshl_b32 {sT0}, {sRp}, 13
    s_lshl_b32 {sT1}, {sHf}, 12
    s_add_u32 {sT0}, {sT0}, {sT1}
    v_add_u32 {vXs[0][0]}, {sT0}, {vT0}
    s_lshr_b32 {sT0}, {sT0}, 2
    s_add_u32 {sT0}, {sT0}, {RS_OFF}
    v_lshl_add_u32 {vRs}, {vL}, 4, {sT0}
    v_and_b32 {vT0}, 16, {vL}
    v_cmp_eq_u32 {sMk2}, 0, {vT0}
    v_lshrrev_b32 {vT0}, 4, {vL}
    v_xor_b32 {vT0}, {vT0}, {vL}
    v_and_b32 {vT0}, 1, {vT0}
    v_cmp_eq_u32 vcc, 0, {vT0}
    v_mov_b32 {vT1}, 0x3f803f80
    s_mov_b32 {sMsk}, 0xffff0000
    v_mov_b32 {vS2[0]}, 0
    v_mov_b32 {vS2[1]}, 0
    """)
    for k in range(4): a(f"v_cndmask_b32 {vSel[k]}, 0, {vT1}, vcc")
    for k in range(1, 4): a(f"v_xor_b32 {vXs[0][k]}, {32*k}, {vXs[0][0]}")
    for k in range(4): a(f"v_add_u32 {vXs[1][k]}, 0x10000, {vXs[0][k]}")
    def sumsq(buf):
        o = []
        for ks in range(2):
            for i in range(0, 4, 2):
                x = buf[ks][0]
                o += [f"v_lshlrev_b32 {vU[0]}, 16, {x[i]}", f"v_and_b32 {vU[1]}, {sMsk}, {x[i]}", f"v_lshlrev_b32 {vU[2]}, 16, {x[i+1]}", f"v_and_b32 {vU[3]}, {sMsk}, {x[i+1]}",
                      f"v_fmac_f32 {vS2[0]}, {vU[0]}, {vU[0]}", f"v_fmac_f32 {vS2[1]}, {vU[1]}, {vU[1]}", f"v_fmac_f32 {vS2[0]}, {vU[2]}, {vU[2]}", f"v_fmac_f32 {vS2[1]}, {vU[3]}, {vU[3]}"]
        return o
    def stats_own(pub, gram=False):
        b = Asm()
        if gram:
            b(f"""
            v_bfi_b32 {vU[0]}, {vS2[0]}, {vU[1]}, {vU[0]}
            v_bfi_b32 {vU[2]}, {vS2[0]}, {vU[3]}, {vU[2]}
            v_bfi_b32 {vS2[0]}, {vS2[1]}, {vU[2]}, {vU[0]}
            """)
        else: b(f"v_add_f32 {vS2[0]}, {vS2[0]}, {vS2[1]}")
        b(f"""
        v_cndmask_b32 {vS1[0]}, {vS1[1]}, {vS1[0]}, {sMk2}
        v_mov_b32 {vS2[1]}, {vS2[0]}
        s_nop 1
        v_permlane32_swap_b32 {vS2[0]}, {vS2[1]}
        s_nop 0
        v_add_f32 {vS2[0]}, {vS2[0]}, {vS2[1]}
        """)
        row_stats_finish(b, vS1[0], vS2[0], vT0, vU[0], pub[1])
        b(f"""
        v_rcp_f32 {vT2}, {pub[1]}
        v_lshrrev_b32 {vT0}, 16, {vU[0]}
        v_or_b32 {vT0}, {vT0}, {vU[0]}
        v_cndmask_b32 {pub[0]}, 0, {vT0}, vcc
        v_mul_f32 {pub[2]}, {fhex(c0)}, {vT2}
        v_mul_f32 {vT0}, {vT2}, {vT2}
        v_mul_f32 {vT0}, {vT0}, {vT2}
        v_mul_f32 {pub[3]}, {fhex(c1)}, {vT0}
        ds_write_b128 {vRs}, {pub}
        v_xor_b32 {vRs}, 1024, {vRs}
        """)
        return [l.strip() for l in b.lines]
    fm = V.mark()
    vFw = V(); vStepC = V(); vStepS = V(); vPhS = V(); vBc = V(); vBs = V(); vKc = V(2); fs = [V(16), V(16)]; fo = V(8)
    V.release(fm)
    a(f"""
    s_cmp_eq_u32 {sMixed}, 0
    s_cbranch_scc1 K1_mlp
    s_lshl_b32 {sT0}, {sU1}, 5
    v_add_u32 {vT0}, {sT0}, {vN1}
    v_cmp_eq_u32 {sMask}, 0, {vT0}
    v_cvt_f32_u32 {vStepC}, {vT0}
    v_mul_f32 {vStepC}, {fhex(1/640)}, {vStepC}
    v_mov_b32 {vT1}, {fhex(0.25)}
    v_cndmask_b32 {vStepS}, {vStepC}, {vT1}, {sMask}
    s_cmp_eq_u32 {sRp}, 0
    s_cselect_b32 {sT2}, {fhex(0.25)}, 0
    v_mov_b32 {vT1}, {sT2}
    v_cndmask_b32 {vPhS}, 0, {vT1}, {sMask}
    s_lshl_b32 {sT2}, {sHf}, 5
    s_add_u32 {sT2}, {sT2}, {sRp}
    s_cmp_ge_u32 {sCk}, 5
    s_cselect_b32 {sT1}, -5, 5
    s_add_u32 {sT1}, {sT1}, {sCk}
    s_lshl_b32 {sT1}, {sT1}, 6
    s_add_u32 {sT2}, {sT2}, {sT1}
    v_lshl_add_u32 {vT0}, {vH}, 3, {sT2}
    s_lshl_b32 {sT0}, {sW}, 11
    s_add_u32 {sT0}, {sT0}, {16384+8192}
    v_lshl_add_u32 {vFw}, {vL}, 4, {sT0}
    v_cvt_f32_u32 {vT0}, {vT0}
    v_mul_f32 {vBc}, {vT0}, {vStepC}
    v_fma_f32 {vBs}, {vT0}, {vStepS}, {vPhS}
    v_mul_f32 {vT0}, {fhex(64.0)}, {vStepC}
    v_cos_f32 {vT0}, {vT0}
    s_nop 0
    v_add_f32 {vKc[0]}, {vT0}, {vT0}
    v_add_f32 {vKc[1]}, {vT0}, {vT0}
    """)
    for c in range(5):
        f = fs[c % 2]
        if c < 2:
            for j, o in enumerate([0, 2, 4, 6, 16, 18, 20, 22]):
                o += 64 * c
                if o == 0: a(f"v_cos_f32 {f[0]}, {vBc}\nv_sin_f32 {f[8]}, {vBs}")
                else: a(f"v_fmamk_f32 {f[j]}, {vStepC}, {fhex(o)}, {vBc}\nv_fmamk_f32 {f[8+j]}, {vStepS}, {fhex(o)}, {vBs}\nv_cos_f32 {f[j]}, {f[j]}\nv_sin_f32 {f[8+j]}, {f[8+j]}")
        else:
            for j in range(0, 16, 2): a(f"v_pk_fma_f32 {f[j:j+2]}, {fs[1-c%2][j:j+2]}, {vKc}, {f[j:j+2]} neg_lo:[0,0,1] neg_hi:[0,0,1]")
            a("s_waitcnt lgkmcnt(0)")
        for j in range(8): a(f"v_cvt_pk_bf16_f32 {fo[j]}, {f[2*j]}, {f[2*j+1]}")
        a(f"ds_write_b128 {vFw}, {fo[0:4]}\nds_write_b128 {vFw}, {fo[4:8]} offset:1024")
        if c < 4: a(f"v_add_u32 {vFw}, {32768 if c < 3 else F4_OFF - 3*32768 - 24576}, {vFw}")
    a(f"s_cmp_eq_u32 {sHf}, 1\ns_cbranch_scc1 K1_dft\nK1_mlp:")
    def xreads(buf, c, hh, vXo=None):
        if vXo: return [f"ds_read_b128 {buf[ks][g]}, {(vXo if g else vXs)[(c%4)//2][2*hh+ks]} offset:{32768*(c%2)}" for ks in range(2) for g in range(2)]
        return [f"ds_read_b128 {buf[ks][g]}, {vXs[(c%4)//2][2*hh+ks]} offset:{32768*(c%2) + 4096*(1-g)}" for ks in range(2) for g in range(2)]
    mark = V.mark()
    vWs = [V(2), V(2)]; vCs = V(4); vXo = [V(4), V(4)]
    for k in range(8): a(f"v_xor_b32 {vXo[k//4][k%4]}, 4096, {vXs[k//4][k%4]}")
    acc = [[V(16) for g in range(2)] for t in range(2)]
    bX = [V(16), V(16)]; bW = [V(16), V(16)]
    bufX = [[[bX[b][8*ks+4*g:8*ks+4*g+4] for g in range(2)] for ks in range(2)] for b in range(2)]
    bufW = [[[bW[b][8*ks+4*t:8*ks+4*t+4] for t in range(2)] for ks in range(2)] for b in range(2)]
    aug = V(16); augX = [aug[0:4], aug[4:8]]; augW = [aug[8:12], aug[12:16]]
    vCa = V(); vOffH = V(); sH = [[S(), S()], [S(), S()]]
    a(f"""
    v_and_b32 {vT0}, 15, {vL}
    v_lshrrev_b32 {vT1}, 2, {vT0}
    v_lshl_add_u32 {vT1}, {vH}, 3, {vT1}
    v_lshlrev_b32 {vT2}, 7, {vT1}
    v_and_b32 {vT1}, 8, {vT0}
    v_lshl_add_u32 {vT2}, {vT1}, 3, {vT2}
    v_and_b32 {vT1}, 16, {vL}
    v_lshl_add_u32 {vT2}, {vT1}, 1, {vT2}
    v_and_b32 {vT1}, 3, {vL}
    v_lshl_add_u32 {vT2}, {vT1}, 3, {vT2}
    s_lshl_b32 {sT0}, {sHf}, 13
    s_add_u32 {sT0}, {sT0}, 16384
    v_add_u32 {vT2}, {sT0}, {vT2}
    s_lshl_b32 {sT1}, {sRp}, 6
    v_xor_b32 {vWs[0][0]}, {sT1}, {vT2}
    v_xor_b32 {vWs[0][1]}, 64, {vWs[0][0]}
    v_add_u32 {vWs[1][0]}, 0x10000, {vWs[0][0]}
    v_add_u32 {vWs[1][1]}, 0x10000, {vWs[0][1]}
    v_lshlrev_b32 {vOffH}, 4, {vT0}
    v_lshl_add_u32 {vOffH}, {vH}, 8, {vOffH}
    v_and_b32 {vT0}, 16, {vL}
    v_lshl_add_u32 {vOffH}, {vT0}, 6, {vOffH}
    s_lshl_b32 {sT0}, {sW}, 7
    s_add_u32 {sT0}, {sT0}, {CS_OFF}
    v_lshl_add_u32 {vCa}, {vN1}, 2, {sT0}
    """)
    for i in (2, 3, 6, 7, 10, 11, 14, 15): a(f"v_mov_b32 {aug[i]}, 0")
    a(f"""
    v_cmp_eq_u32 vcc, 0, {vH}
    s_lshl_b32 {sT0}, {sRb}, 1
    s_add_u32 {sT0}, {sT0}, {sRp}
    s_mul_i32 {sT0}, {sT0}, 108
    s_lshl_b32 {sT2}, {sUnit}, 1
    s_add_u32 {sT0}, {sT0}, {sT2}
    s_add_u32 {sT0}, {sT0}, {sRp}
    s_lshl_b32 {sT0}, {sT0}, 11
    s_add_u32 {sT2}, {sT0}, {54*2048}
    s_cmp_eq_u32 {sHf}, 0
    s_cselect_b32 {sH[0][0]}, {sT0}, {sT2}
    s_cselect_b32 {sH[0][1]}, {sT2}, {sT0}
    """)
    if 'H' in dbg: a(f"s_lshl_b32 {sT0}, s2, 2\ns_add_u32 {sT0}, {sT0}, {sW}\ns_mul_i32 {sT0}, {sT0}, 6144\ns_and_b32 {sH[0][0]}, {sT0}, 0xfffff000\ns_add_u32 {sH[0][1]}, {sH[0][0]}, 4096")
    a(f"""
    s_xor_b32 {sH[1][0]}, {sH[0][0]}, 2048
    s_xor_b32 {sH[1][1]}, {sH[0][1]}, 2048
    s_waitcnt lgkmcnt(0)
    """)
    a.srd_off(r2, pWS, WS_H, H_BYTES)
    tagload(r3)
    if 'X' in dbg or 'Y' in dbg:
        st_ = 0x200000 if 'X' in dbg else 0x80000
        n_ = 3 if 'X' in dbg else 11
        a(f"s_mul_i32 {sT0}, {sW}, {n_*st_}\ns_add_u32 {r1[0]}, {pWS[0]}, {sT0}\ns_addc_u32 {r1[1]}, {pWS[1]}, 0")
        for i in range(n_): a(f"s_mov_b32 {sT0}, {i*st_}\ns_load_dword {r1[2]}, {r1[0:2]}, {sT0}")
    if 'V' in dbg:
        a.srd(r1, pWS[0], pWS[1], 0x1460000)
        a(f"s_lshl_b32 {sT0}, {sW}, 30\nv_lshl_add_u32 {vT0}, {vL}, 21, {sT0}\nbuffer_load_dword {vPf}, {vT0}, {r1}, 0 offen")
    if 'W' in dbg:
        a.srd(r1, pWS[0], pWS[1], 0x2400000)
        a(f"v_lshlrev_b32 {vT0}, 19, {vL}\ns_lshl_b32 {sT0}, s2, 7\nbuffer_load_dword {vPf}, {vT0}, {r1}, {sT0} offen")
    a(f"""
    s_lshl_b32 {sT0}, {sW}, 6
    s_add_u32 {sT0}, {sT0}, {B1_OFF}
    v_lshl_add_u32 {augW[0][1]}, {vN1}, 1, {sT0}
    v_xor_b32 {augW[1][1]}, 64, {augW[0][1]}
    """)
    ST(1)
    def mreads(b, c, hh):
        o = xreads(bufX[b], c, hh, vXo)
        w = [f"ds_read_b64_tr_b16 {bufW[b][ks][t][2*e:2*e+2]}, {vWs[(c%4)//2][t]} offset:{32768*(c%2) + 4096*hh + 2048*ks + 512*e}" for ks in range(2) for t in range(2) for e in range(2)]
        return o[0:2] + w[0:4] + o[2:4] + w[4:8]
    def mmain(b, first=False):
        o = []
        for ks in range(2):
            z = first and ks == 0
            mm = [f"{MF32} {acc[t][g]}, {bufW[b][ks][t]}, {bufX[b][ks][g]}, {0 if z else acc[t][g]}" for t in range(2) for g in range(2)]
            o += [f"{MF16} {vCs}, {vSel}, {bufW[b][ks][0]}, {0 if z else vCs}", f"{MF16} {vS1}, {vSel}, {bufX[b][ks][0]}, {0 if z else vS1}"] + mm
        return o
    RD = [1, 1, 2, 2, 2, 2, 0, 0, 2, 0, 0, 0]; SQ = [0, 0, 2, 4, 2, 4, 2, 2, 4, 4, 4, 4]
    a(".p2align 3\nK1_mloop:")
    for c in range(10):
        a("s_waitcnt lgkmcnt(0)\ns_barrier")
        if c == 0:
            ST(2)
            for t in range(2): a(f"ds_read_u16 {augW[t][1]}, {augW[t][1]}")
        for l in (weave(mmain(1), (mreads(0, c, 0), RD), (sumsq(bufX[1]), SQ)) if c else mreads(0, c, 0)): a(l)
        a("s_waitcnt lgkmcnt(0)\ns_nop 0")
        for l in weave(mmain(0, c == 0), (mreads(1, c, 1), RD), (sumsq(bufX[0]), SQ)): a(l)
    a("K1_mloope:\ns_waitcnt lgkmcnt(0)")
    ST(3)
    rs = [bX[0][0:4], bX[0][4:8]]
    m = mmain(1); m = m[0:2] + m[6:8] + m[2:6] + m[8:12]
    cs = [f"v_cndmask_b32 {vCs[0]}, {vCs[1]}, {vCs[0]}, {sMk2}", f"v_cvt_pk_bf16_f32 {vT0}, -{vCs[0]}, -{vCs[0]}", f"v_and_b32 {vT1}, 0xffff0000, {vT0}",
          f"v_sub_f32 {vT1}, -{vCs[0]}, {vT1}", f"v_cvt_pk_bf16_f32 {augW[0][0]}, -{vCs[0]}, {vT1}", f"ds_write_b32 {vCa}, {augW[0][0]}", f"v_xor_b32 {vCa}, 128, {vCa}"]
    for l in weave(m, (sumsq(bufX[1]) + cs + stats_own(rs[0]), [2, 2, 2, 2, 7, 7, 7, 7, 7, 7, 7, 7])): a(l)
    a(f"""
    s_waitcnt lgkmcnt(0)
    s_barrier
    ds_read_b128 {rs[1]}, {vRs}
    ds_read_b32 {augW[1][0]}, {vCa}
    """)
    for g in range(2):
        a(f"""
        s_waitcnt lgkmcnt({2 - 2*g})
        v_lshrrev_b32 {vT1}, 16, {rs[g][1]}
        v_mov_b32 {augX[g][0]}, {rs[g][0]}
        v_cndmask_b32 {augX[g][1]}, 0, {vT1}, vcc
        s_nop 1
        {MF32} {acc[0][g]}, {augW[0]}, {augX[g]}, {acc[0][g]}
        """)
    for g in range(2): a(f"{MF32} {acc[1][g]}, {augW[1]}, {augX[g]}, {acc[1][g]}")
    a("s_nop 3")
    gq = [bW[1][2*i:2*i+2] for i in range(8)]
    ST(4)
    far = []
    if local: a(f"s_cmp_eq_u32 {sUnit}, 13\ns_cselect_b32 s68, 0, 1")
    a(".p2align 3")
    for t in range(2):
        for g in range(2):
            P = [acc[t][g][2*i:2*i+2] for i in range(8)]
            for i in range(8): a(f"v_pk_mul_f32 {gq[i]}, {P[i]}, {P[i]}")
            for i in range(8): a(f"v_pk_fma_f32 {gq[i]}, {gq[i]}, {rs[g][2:4]}, {rs[g][2:4]} op_sel:[0,1,0] op_sel_hi:[1,1,0]")
            for i in range(8): a(f"v_pk_mul_f32 {gq[i]}, {gq[i]}, {P[i]}")
            for i in range(8): a(f"v_exp_f32 {gq[i][0]}, {gq[i][0]}\nv_exp_f32 {gq[i][1]}, {gq[i][1]}")
            for i in range(8): a(f"v_pk_fma_f32 {gq[i]}, {gq[i]}, {rs[g][0:2]}, {rs[g][0:2]} op_sel:[0,1,1]")
            for i in range(8): a(f"v_rcp_f32 {gq[i][0]}, {gq[i][0]}\nv_rcp_f32 {gq[i][1]}, {gq[i][1]}")
            for i in range(8): a(f"v_pk_mul_f32 {gq[i]}, {gq[i]}, {P[i]}")
            for i in range(8): a(f"v_cvt_pk_bf16_f32 {acc[t][g][i]}, {gq[i][0]}, {gq[i][1]}")
            st = [f"buffer_store_dwordx4 {acc[t][g][4*e:4*e+4]}, {vOffH}, {r2}, {sH[t][g]} offen offset:{512*e}" for e in range(2)]
            if local:
                a(f"s_cbranch_scc1 K1_far{t}{g}\ns_nop 0\n{st[0]}\n{st[1]}\nK1_back{t}{g}:")
                far.append(f"K1_far{t}{g}:\n{st[0]} sc1\n{st[1]} sc1\ns_branch K1_back{t}{g}")
            else: a(f"{st[0]} {SC}\n{st[1]} {SC}")
    ST(5); finish()
    for l in far: a(l)
    hi = max(hi, V.hi)
    V.release(mark)
    acc = [[V(16) for k in range(4)] for g in range(2)]
    bX = [V(16), V(16)]; bF = [V(16), V(16)]; pm = V(16)
    bufX = [[[bX[b][8*ks+4*g:8*ks+4*g+4] for g in range(2)] for ks in range(2)] for b in range(2)]
    vFs = V(3); vSg = V(); vSelE = sH[0][0]; vSelO = sH[0][1]; vRot = V(4); vRt = V(); vMu = V(2); sN2 = sH[1][0]; vO1 = vXs[0][0]; vO2 = vXs[0][1]; vO3 = vXs[0][2]; vRd = vXs[0][3]; vRw = vXs[1][0]
    vStepR = pm[0]; vBaseR = pm[1]
    a(f"""
    K1_dft:
    s_mov_b32 {vSelE}, 0x05040100
    s_mov_b32 {vSelO}, 0x07060302
    v_lshlrev_b32 {vT2}, 4, {vL}
    s_lshl_b32 {sT0}, {sRp}, 13
    s_add_u32 {sT0}, {sT0}, {RTAB_OFF}
    v_add_u32 {vRt}, {sT0}, {vT2}
    v_add_u32 {vFs[0]}, {16384+8192}, {vT2}
    v_add_u32 {vFs[1]}, {65536+16384+8192}, {vT2}
    v_add_u32 {vFs[2]}, {F4_OFF}, {vT2}
    v_lshlrev_b32 {vSg}, 31, {vL}
    s_lshl_b32 {sT0}, {sUnit}, 5
    v_add_u32 {vT0}, {sT0}, {vN1}
    v_cmp_eq_u32 {sMask}, 0, {vT0}
    s_lshl_b32 {sN2}, {sRb}, 2
    s_lshl_b32 {sT2}, {sRp}, 1
    s_add_u32 {sN2}, {sN2}, {sT2}
    v_cndmask_b32 {vMu[0]}, 1.0, 0, {sMask}
    v_cndmask_b32 {vMu[1]}, 1.0, 0, {sMask}
    """)
    for k in range(8): a(f"v_xor_b32 {vXs[k//4][k%4]}, 4096, {vXs[k//4][k%4]}")
    a(f"v_bfe_i32 {vS2[0]}, {vL}, 0, 1\nv_bfe_i32 {vS2[1]}, {vL}, 1, 1")
    for g in range(2):
        Rv = bF[g]
        a(f"""
        v_lshrrev_b32 {vT1}, 1, {vN1}
        v_cvt_f32_u32 {vT1}, {vT1}
        v_mul_f32 {vStepR}, {fhex(1/32)}, {vT1}
        s_add_u32 {sT2}, {sN2}, {1-g}
        v_cvt_f32_u32 {vT2}, {sT2}
        v_mul_f32 {vBaseR}, {vT2}, {vT1}
        v_mul_f32 {vBaseR}, {fhex(1/2048)}, {vBaseR}
        v_and_b32 {vT1}, 1, {vN1}
        v_cvt_f32_u32 {vT1}, {vT1}
        v_fmac_f32 {vBaseR}, {fhex(-0.25)}, {vT1}
        v_cmp_eq_u32 vcc, 1, {vN1}
        v_cvt_f32_u32 {vT1}, {vH}
        v_mul_f32 {vT1}, 4.0, {vT1}
        v_cndmask_b32 {vStepR}, {vStepR}, 0.5, vcc
        v_cndmask_b32 {vBaseR}, {vBaseR}, 0, vcc
        v_fmac_f32 {vBaseR}, {vT1}, {vStepR}
        v_cmp_eq_u32 vcc, 0, {vH}
        v_mul_f32 {vT2}, {fhex(1/128)}, {vT2}
        s_nop 0
        v_cndmask_b32 {vT2}, 0, {vT2}, vcc
        v_cos_f32 {vRot[2*g]}, {vT2}
        v_sin_f32 {vRot[2*g+1]}, {vT2}
        """)
        for i in range(16):
            n1 = (i % 4) + 8 * (i // 4)
            if n1 == 0: a(f"v_cos_f32 {Rv[0]}, {vBaseR}")
            else: a(f"v_fmamk_f32 {Rv[i]}, {vStepR}, {fhex(n1)}, {vBaseR}\nv_cos_f32 {Rv[i]}, {Rv[i]}")
        for i in range(4): a(f"ds_write_b128 {vRt}, {Rv[4*i:4*i+4]} offset:{4096*g + 1024*i}")
    a("s_waitcnt lgkmcnt(0)")
    a.srd_off(r2, pWS, WS_V, V_BYTES)
    tagload(r3)
    a(f"s_lshr_b32 {sT1}, {sN2}, 1\ns_mul_i32 {sT1}, {sT1}, {V_ROW}")
    ST(1)
    def dhalf(b, reads, first=False, last=None, flip=None):
        perm = lambda g, par: [f"v_perm_b32 {pm[8*g+4*par+i]}, {bufX[b][i//2][g][2*(i%2)+1]}, {bufX[b][i//2][g][2*(i%2)]}, {vSelO if par else vSelE}" for i in range(4)]
        g4 = [f"{MF4} {vU}, {bufX[b][i//2][0][2*(i%2):2*(i%2)+2]}, {bufX[b][i//2][0][2*(i%2):2*(i%2)+2]}, {0 if first and i == 0 else vU}" for i in range(4)]
        mm = g4 + [f"{MF16} {vS1}, {vSel}, {bufX[b][ks][0]}, {0 if first and ks == 0 else vS1}" for ks in range(2)]
        mm += [f"{MF32} {acc[g][k]}, {pm[8*g+4*(k//2):8*g+4*(k//2)+4]}, {bF[b][4*k:4*k+4]}, {0 if first else acc[g][k]}" for g in range(2) for k in range(4)]
        pr = perm(0, 0) + perm(0, 1) + perm(1, 0) + perm(1, 1)
        fl = ([], [0]*14)
        if flip is not None:
            fl = ([f"v_xor_b32 {acc[flip][k][i]}, {vSg}, {acc[flip][k][i]}" for k in range(4) for i in range(16)] + ["s_nop 1"],
                  [0]*10 + [16, 16, 16, 17] if flip == 0 else [0]*6 + [16, 16, 16, 17, 0, 0, 0, 0])
        for l in weave(mm, (pr, [2, 2, 2, 0, 1, 1, 3, 3, 2, 0, 0, 0, 0, 0]), (reads, [0]*6 + [2, 2, 2, 2, 0, 0, 0, 0]), (last or [], [0]*8 + [3, 6, 6, 6, 6, 6]), fl): a(l)
    def dreads(b, c, hh): return xreads(bufX[b], c, hh) + [f"ds_read_b128 {bF[b][4*i:4*i+4]}, {vFs[(c%5)//2]} offset:{32768*((c%5)%2) + 4096*hh + 1024*i}" for i in range(4)]
    a(".p2align 3\nK1_dloop:")
    for c in range(10):
        a("s_waitcnt lgkmcnt(0)\ns_barrier")
        if c == 0:
            ST(2)
            for l in dreads(0, c, 0): a(l)
        else: dhalf(1, dreads(0, c, 0), flip=0 if c == 5 else None)
        a("s_waitcnt lgkmcnt(0)\ns_nop 0")
        dhalf(0, dreads(1, c, 1), c == 0, flip=1 if c == 5 else None)
    a("K1_dloope:\ns_waitcnt lgkmcnt(0)")
    ST(3)
    Rv = [bF[0], bF[1]]; rs = bX[1]; augX = [bX[0][0:4], bX[0][4:8]]; augF = bX[0][8:12]
    dhalf(1, [f"ds_read_b128 {bF[0][4*i:4*i+4]}, {vRt} offset:{1024*i}" for i in range(4)], last=stats_own(augX[0], True))
    a(f"""
    s_lshl_b32 {sT0}, {sRp}, 8
    s_add_u32 {sT0}, {sT0}, {RSTD_OFF}
    v_lshl_add_u32 {vRd}, {vH}, 4, {sT0}
    v_lshl_add_u32 {vRw}, {vN1}, 2, {sT0}
    ds_write_b32 {vRw}, {vT2}
    s_waitcnt lgkmcnt(0)
    s_barrier
    ds_read_b64 {augX[1][0:2]}, {vRs}
    """)
    for i in range(4): a(f"ds_read_b128 {rs[4*i:4*i+4]}, {vRd} offset:{32*i}")
    for i in range(4): a(f"ds_read_b128 {bF[1][4*i:4*i+4]}, {vRt} offset:{4096 + 1024*i}")
    a(f"v_mov_b32 {vT2}, 0xc3a0\nv_cndmask_b32 {augF[0]}, 0, {vT2}, {sMask}")
    for i in range(1, 4): a(f"v_mov_b32 {augX[0][i]}, 0\nv_mov_b32 {augF[i]}, 0")
    a(f"""
    v_mov_b32 {augX[1][2]}, 0
    v_mov_b32 {augX[1][3]}, 0
    {MF32} {acc[0][0]}, {augX[0]}, {augF}, {acc[0][0]}
    {MF32} {acc[0][2]}, {augX[0]}, {augF}, {acc[0][2]}
    s_waitcnt lgkmcnt(8)
    v_rcp_f32 {vT2}, {augX[1][1]}
    {MF32} {acc[1][0]}, {augX[1]}, {augF}, {acc[1][0]}
    {MF32} {acc[1][2]}, {augX[1]}, {augF}, {acc[1][2]}
    ds_write_b32 {vRw}, {vT2} offset:128
    s_lshl_b32 {sT0}, {sUnit}, 5
    v_add_u32 {vT0}, {sT0}, {vN1}
    v_sub_u32 {vT1}, 351, {vT0}
    s_mov_b32 {sT0}, {2*32*V_ROW}
    v_mul_lo_u32 {vT2}, {vH}, {sT0}
    v_lshl_add_u32 {vO1}, {vT0}, 4, {vT2}
    v_lshl_add_u32 {vO2}, {vT1}, 4, {vT2}
    v_cmp_gt_u32 vcc, 8, {vN1}
    v_add_u32 {vT1}, {160*16}, {vO1}
    v_mov_b32 {vT2}, 0x7f000000
    v_cndmask_b32 {vO3}, {vT2}, {vT1}, vcc
    """)
    NEG0 = "neg_lo:[1,0,0] neg_hi:[1,0,0]"; NEG1 = "neg_lo:[0,1] neg_hi:[0,1]"
    tt = bX[0]
    a(".p2align 3")
    for g in range(2):
        if g:
            for i in range(4): a(f"ds_read_b128 {rs[4*i:4*i+4]}, {vRd} offset:{128*g + 32*i}")
        A_ = acc[g]
        for i in range(0, 16, 2):
            a(f"v_pk_fma_f32 {tt[i:i+2]}, {A_[3][i:i+2]}, {vMu}, {A_[1][i:i+2]}\nv_pk_fma_f32 {A_[3][i:i+2]}, {A_[1][i:i+2]}, {vMu}, {A_[3][i:i+2]} {NEG0}")
        for i in range(0, 16, 2):
            a(f"v_pk_add_f32 {A_[1][i:i+2]}, {A_[0][i:i+2]}, {A_[2][i:i+2]} {NEG1}\nv_pk_add_f32 {A_[0][i:i+2]}, {A_[0][i:i+2]}, {A_[2][i:i+2]}")
        a("s_waitcnt lgkmcnt(0)\ns_nop 0")
        for i in range(0, 16, 2): a(f"v_pk_mul_f32 {Rv[g][i:i+2]}, {Rv[g][i:i+2]}, {rs[i:i+2]}")
        for i in range(8): a(f"v_cvt_pk_bf16_f32 {Rv[g][i]}, {Rv[g][2*i]}, {Rv[g][2*i+1]}")
        B = [pm[0:8], pm[8:16], tt[0:8], Rv[g][8:16]]
        cv = lambda t, src: [f"v_cvt_pk_bf16_f32 {B[t][i]}, {src[2*i]}, {src[2*i+1]}" for i in range(8)]
        mf = lambda t: [f"{MF32} {A_[t]}, {Rv[g][0:4]}, {B[t][0:4]}, 0", f"{MF32} {A_[t]}, {Rv[g][4:8]}, {B[t][4:8]}, {A_[t]}"]
        for l in cv(2, tt) + cv(0, A_[0])[0:2]: a(l)
        for l in weave(mf(2) + mf(0) + mf(1) + mf(3), (cv(0, A_[0])[2:] + cv(1, A_[1]) + cv(3, A_[3]), [4, 4, 4, 4, 4, 2, 0, 0]), (["s_nop 1", "s_nop 0"], [0, 0, 0, 0, 0, 2, 0, 0])): a(l)
    ST(4)
    def rotate(C, Sn, g):
        a(f"""
        v_mul_f32 {vT0}, {C}, {vRot[2*g+1]}
        v_mul_f32 {C}, {C}, {vRot[2*g]}
        v_fma_f32 {C}, -{Sn}, {vRot[2*g+1]}, {C}
        v_fma_f32 {Sn}, {Sn}, {vRot[2*g]}, {vT0}
        """)
    a(f"s_cmp_lg_u32 {sUnit}, 0\ns_cbranch_scc1 K1_dgen")
    o3 = [bX[0], bX[1]]
    for g in range(2):
        a(f"v_mov_b32 {vT1}, {acc[g][2][1]}\nv_mov_b32 {vT2}, {acc[g][3][1]}")
        rotate(vT1, vT2, g)
        for i in range(16):
            c_, s_ = (vT1, vT2) if i == 1 else (acc[g][2][i], acc[g][3][i])
            a(f"v_cvt_pk_bf16_f32 {o3[i//8][2*(i%8)+1-g]}, {c_}, {s_}")
        for k in (2, 3):
            for i in range(0, 16, 2): a(f"v_pk_mul_f32 {acc[g][k][i:i+2]}, {acc[g][k][i:i+2]}, {vMu}")
    for i in range(0, 16, 2):
        kap = (i % 4) // 2 + 4 * (i // 4)
        a(f"s_add_u32 {sT0}, {sT1}, {kap*32*V_ROW}\nbuffer_store_dwordx4 {o3[i//8][2*(i%8):2*(i%8)+4]}, {vO3}, {r2}, {sT0} offen {SC}")
    a(".p2align 3\nK1_dgen:")
    rotate(acc[0][0][1], acc[0][2][1], 0); rotate(acc[0][1][1], acc[0][3][1], 0)
    a("s_nop 1\ns_nop 0")
    rotate(acc[1][0][1], acc[1][2][1], 1); rotate(acc[1][1][1], acc[1][3][1], 1)
    ob = [bF[0], bF[1], pm]
    for i in range(0, 16, 2):
        kap = (i % 4) // 2 + 4 * (i // 4)
        o = ob[i // 4][4*(i%4):4*(i%4)+8] if i < 12 else acc[0][i - 12][0:8]
        if kap: a(f"s_add_u32 {sT0}, {sT1}, {kap*32*V_ROW}")
        for k in range(2):
            for sg in range(2):
                for g in range(2): a(f"v_cvt_pk_bf16_f32 {o[4*k+2*sg+1-g]}, {acc[g][k][i+sg]}, {acc[g][2+k][i+sg]}")
            a(f"buffer_store_dwordx4 {o[4*k:4*k+4]}, {vO2 if k else vO1}, {r2}, {sT0 if kap else sT1} offen {SC}")
    ST(5); ST(7); finish(27)
    if not fused: a("K1_end:\ns_endpgm")
    if dbg:
        out = []; inloop = False; hl = False; ht = False; df = False
        for l in a.lines:
            t = l.strip()
            if t in ("K1_mloop:", "K1_dloop:"): inloop = True
            if t in ("K1_mloope:", "K1_dloope:"): inloop = False
            if 'q' in dbg and inloop and (t.startswith("v_fmac") or t.startswith("v_lshlrev_b32") or t.startswith("v_and_b32")): continue
            if 'f' in dbg and inloop and t.startswith(MF16): continue
            if 'r' in dbg and inloop and t.startswith("ds_read"): continue
            if 't' in dbg and inloop and t.startswith("ds_read_b64_tr"): continue
            if 'm' in dbg and inloop and t.startswith(MF32): continue
            if 'd' in dbg and t.endswith(" lds"): continue
            if t == "K1_htail:": ht = True
            if t == "K1_comp:": ht = False
            if 'c' in dbg and ht and t.startswith("buffer_store_dwordx4"): continue
            if t == "K1_dft:": df = True
            if 'v' in dbg and df and t.startswith("buffer_store_dwordx4"): continue
            if 'h' in dbg and not df and not ht and t.startswith("buffer_store_dwordx4"): continue
            if 'l' in dbg and ht and t.startswith("buffer_load_dwordx"): l = l.replace("offen", "offen offset:0").replace(t.split(",")[1], " v1")
            if 'n' in dbg: l = l.replace(" sc1", "")
            if 'N' in dbg and ht: l = l.replace(" sc1", "")
            if '4' in dbg and inloop and t.startswith(MF4): continue
            if 'p' in dbg and inloop and t.startswith("v_perm"): continue
            if 'w' in dbg and hl and t.startswith("ds_write"): continue
            if 'P' in dbg and t.startswith("buffer_load_dword v") and "s[32:35]" in t: continue
            if 's' in dbg and (t.startswith("v_add_f32 v3") or t.startswith("v_fmac_f32 v3")) and not inloop and hl: continue
            if 'S' in dbg and hl and (t.startswith("v_") or t.startswith("ds_")): continue
            if t in ("K1_hploop:", "K1_hmloop:"): hl = True
            if t == "K1_hmix:" or t.startswith("s_cbranch_scc1 K1_hmloop"): hl = False
            if t == "K1_htail:": hl = False
            out.append(l)
            if inloop and t == "s_barrier":
                for ch in dbg:
                    if ch in "123": out.append(f"    s_sleep {ch}")
        a.lines = out
    return a.text(), max(hi, V.hi)
if __name__ == "__main__":
    import sys
    for st in (False, True):
        t, nv = gen_k1(st)
        open("k1_st.s" if st else "k1.s", "w").write(module([("k1_kernel", t, nv, None)], [("k1_kernel", 256, 512, K1_LDS)], extra_text="code_end:\n"))
    print("vgprs", nv)
```

```python
from asmlib import *
from k1 import weave, row_stats_finish, MF32, MF16, MF4
import sp as C
def emit(L):
    globals().update({k: v for k, v in L.items() if k not in ("C",)})
    F_OFF = 65536; RS_OFF = F_OFF + 40960
    NEG0 = "neg_lo:[1,0,0] neg_hi:[1,0,0]"; NEG1 = "neg_lo:[0,1] neg_hi:[0,1]"; NEG2 = C.NEG2
    V.release(mark); S.release(smark)
    vN1 = V(); vH = V(); vXs = V(4); vFs = V(); vSg = V(); vMu = V(2); vRot = V(2); vS1 = V(4); vU = V(4); vSel = V(4); vBit = V(2)
    vO = V(3); vStep = V(); vBase = V()
    sUnit, sN2, sSelE, sSelO = S(), S(), S(), S(); sMk2 = S(2)
    acc = [V(16) for k in range(4)]; bX = [V(8), V(8)]; bF = [V(16), V(16)]; pm = V(8); Rv = V(16); tt = V(16); B = V(32)
    vFw, vStepS, vPhS, vBs = tt[0], tt[1], tt[2], tt[3]; vKc = tt[4:6]; fs = [acc[0], acc[1]]; fo = acc[2]
    a(f"""
    S_t1:
    v_and_b32 {vN1}, 31, {vL}
    v_lshrrev_b32 {vH}, 5, {vL}
    s_mul_i32 {sUnit}, {sJ}, 3
    s_add_u32 {sUnit}, {sUnit}, {sM}
    s_sub_u32 {sUnit}, {sUnit}, 5
    s_lshl_b32 {sT0}, {sUnit}, 5
    v_add_u32 {vO[0]}, {sT0}, {vN1}               ; k
    v_cmp_eq_u32 {sMask}, 0, {vO[0]}
    v_cvt_f32_u32 {vStep}, {vO[0]}
    v_mul_f32 {vStep}, {fhex(1/640)}, {vStep}
    v_mov_b32 {vT1}, {fhex(0.25)}
    v_cndmask_b32 {vStepS}, {vStep}, {vT1}, {sMask}
    s_and_b32 {sT1}, {sW}, 1
    s_cmp_eq_u32 {sT1}, 0
    s_cselect_b32 {sT2}, {fhex(0.25)}, 0
    v_mov_b32 {vT1}, {sT2}
    v_cndmask_b32 {vPhS}, 0, {vT1}, {sMask}
    s_lshr_b32 {sT2}, {sW}, 1
    s_lshl_b32 {sT2}, {sT2}, 5
    s_add_u32 {sT2}, {sT2}, {sT1}
    s_cmp_ge_u32 {sCk}, 5
    s_cselect_b32 {sT1}, -5, 5
    s_add_u32 {sT1}, {sT1}, {sCk}
    s_lshl_b32 {sT1}, {sT1}, 6
    s_add_u32 {sT2}, {sT2}, {sT1}
    v_lshl_add_u32 {vT0}, {vH}, 3, {sT2}
    v_add_u32 {vFs}, {F_OFF}, {vL16}
    s_lshl_b32 {sT0}, {sW}, 11
    v_add_u32 {vFw}, {sT0}, {vFs}
    v_cvt_f32_u32 {vT0}, {vT0}
    v_mul_f32 {vBase}, {vT0}, {vStep}
    v_fma_f32 {vBs}, {vT0}, {vStepS}, {vPhS}
    v_mul_f32 {vT0}, {fhex(64.0)}, {vStep}
    v_cos_f32 {vT0}, {vT0}
    s_nop 0
    v_add_f32 {vKc[0]}, {vT0}, {vT0}
    v_add_f32 {vKc[1]}, {vT0}, {vT0}
    """)
    offs = [0, 2, 4, 6, 16, 18, 20, 22]
    for c in range(5):
        f = fs[c % 2]; o8 = fo[8*(c%2):8*(c%2)+8]
        if c < 2:
            for j, o in enumerate(offs):
                if o + c: a(f"v_fmamk_f32 {f[j]}, {vStep}, {fhex(o + 64*c)}, {vBase}\nv_fmamk_f32 {f[8+j]}, {vStepS}, {fhex(o + 64*c)}, {vBs}")
            for j, o in enumerate(offs): a(f"v_cos_f32 {f[j]}, {f[j] if o + c else vBase}\nv_sin_f32 {f[8+j]}, {f[8+j] if o + c else vBs}")
        else:
            for j in range(0, 16, 2): a(f"v_pk_fma_f32 {f[j:j+2]}, {fs[1-c%2][j:j+2]}, {vKc}, {f[j:j+2]} {NEG2}")
        for j in range(8): a(f"v_cvt_pk_bf16_f32 {o8[j]}, {f[2*j]}, {f[2*j+1]}")
        a(f"ds_write_b128 {vFw}, {o8[0:4]} offset:{8192*c}\nds_write_b128 {vFw}, {o8[4:8]} offset:{8192*c + 1024}")
    a("s_waitcnt lgkmcnt(0)")
    common_after_kernarg()
    a.srd_off(r0, pWS, C.WS_V, C.V_BYTES)
    a.srd_off(r1, pWS, C.WS_ST, C.ST_BYTES)
    a(f"""
    s_mov_b32 {sSelE}, 0x05040100
    s_mov_b32 {sSelO}, 0x07060302
    s_lshl_b32 {sN2}, {sRb}, 2
    s_add_u32 {sN2}, {sN2}, {sW}
    v_lshrrev_b32 {vT0}, 1, {vN1}
    v_and_b32 {vT1}, 7, {vT0}
    v_xor_b32 {vT1}, {vT1}, {vH}
    v_lshlrev_b32 {vT1}, 4, {vT1}
    v_lshl_add_u32 {vT1}, {vN1}, 7, {vT1}
    s_lshl_b32 {sT0}, {sW}, 12
    v_add_u32 {vXs[0]}, {sT0}, {vT1}
    v_xor_b32 {vXs[1]}, 32, {vXs[0]}
    v_xor_b32 {vXs[2]}, 64, {vXs[0]}
    v_xor_b32 {vXs[3]}, 96, {vXs[0]}
    v_lshlrev_b32 {vSg}, 31, {vL}
    v_cndmask_b32 {vMu[0]}, 1.0, 0, {sMask}
    v_cndmask_b32 {vMu[1]}, 1.0, 0, {sMask}
    v_bfe_i32 {vBit[0]}, {vL}, 0, 1
    v_bfe_i32 {vBit[1]}, {vL}, 1, 1
    v_and_b32 {vT1}, 16, {vL}
    v_cmp_eq_u32 {sMk2}, 0, {vT1}
    v_lshrrev_b32 {vT1}, 4, {vL}
    v_xor_b32 {vT1}, {vT1}, {vL}
    v_and_b32 {vT1}, 1, {vT1}
    v_cmp_eq_u32 vcc, 0, {vT1}
    v_mov_b32 {vT1}, 0x3f803f80
    v_cvt_f32_u32 {vT0}, {vT0}
    """)
    for k in range(4): a(f"v_cndmask_b32 {vSel[k]}, 0, {vT1}, vcc")
    a(f"""
    v_mul_f32 {vStep}, {fhex(1/32)}, {vT0}
    v_cvt_f32_u32 {vT2}, {sN2}
    v_mul_f32 {vBase}, {vT2}, {vT0}
    v_mul_f32 {vBase}, {fhex(1/2048)}, {vBase}
    v_and_b32 {vT1}, 1, {vN1}
    v_cvt_f32_u32 {vT1}, {vT1}
    v_fmac_f32 {vBase}, {fhex(-0.25)}, {vT1}
    v_cmp_eq_u32 vcc, 1, {vN1}
    v_cvt_f32_u32 {vT1}, {vH}
    v_mul_f32 {vT1}, 4.0, {vT1}
    v_cndmask_b32 {vStep}, {vStep}, 0.5, vcc
    v_cndmask_b32 {vBase}, {vBase}, 0, vcc
    v_fmac_f32 {vBase}, {vT1}, {vStep}
    v_cmp_gt_u32 vcc, 8, {vN1}
    v_sub_u32 {vT1}, 351, {vO[0]}
    v_mul_u32_u24 {vT0}, {64*C.V_ROW}, {vH}
    v_lshl_add_u32 {vO[1]}, {vT1}, 4, {vT0}
    v_lshl_add_u32 {vO[0]}, {vO[0]}, 4, {vT0}
    v_add_u32 {vT1}, {160*16}, {vO[0]}
    v_mov_b32 {vT0}, {C.BIG}
    v_cndmask_b32 {vO[2]}, {vT0}, {vT1}, vcc
    v_cmp_eq_u32 vcc, 0, {vH}
    v_mul_f32 {vT2}, {fhex(1/128)}, {vT2}
    s_nop 0
    v_cndmask_b32 {vT2}, 0, {vT2}, vcc
    v_cos_f32 {vRot[0]}, {vT2}
    v_sin_f32 {vRot[1]}, {vT2}
    """)
    for i in range(1, 16): a(f"v_fmamk_f32 {Rv[i]}, {vStep}, {fhex((i % 4) + 8*(i // 4))}, {vBase}")
    for i in range(16): a(f"v_cos_f32 {Rv[i]}, {Rv[i] if i else vBase}")
    ST(1)
    def half(b, reads, first=False):
        x = bX[b]
        pr = [f"v_perm_b32 {pm[4*par+i]}, {x[2*i+1]}, {x[2*i]}, {sSelO if par else sSelE}" for par in range(2) for i in range(4)]
        mm = [f"{MF4} {vU}, {x[2*i:2*i+2]}, {x[2*i:2*i+2]}, {0 if first and i == 0 else vU}" for i in range(4)]
        mm += [f"{MF16} {vS1}, {vSel}, {x[4*k:4*k+4]}, {0 if first and k == 0 else vS1}" for k in range(2)]
        mm += [f"{MF32} {acc[k]}, {pm[4*(k//2):4*(k//2)+4]}, {bF[b][4*k:4*k+4]}, {0 if first else acc[k]}" for k in range(4)]
        for l in weave(mm, (pr, [2, 2, 2, 0, 1, 1, 0, 0, 0, 0]), (reads, [0, 0, 0, 1, 1, 0, 2, 2, 0, 0])): a(l)
    def rds(b, c): return [f"ds_read_b128 {bX[b][4*k:4*k+4]}, {vXs[2*b+k]} offset:{16384*(c%4)}" for k in range(2)] + \
                          [f"ds_read_b128 {bF[b][4*i:4*i+4]}, {vFs} offset:{8192*(c%5) + 4096*b + 1024*i}" for i in range(4)]
    for c in range(10):
        a(".p2align 3\ns_waitcnt lgkmcnt(0)\ns_barrier")
        if c == 0:
            ST(2)
            for l in rds(0, 0): a(l)
        else: half(1, rds(0, c))
        if c == 5:
            a("s_nop 7")
            for k in range(4):
                for i in range(16): a(f"v_xor_b32 {acc[k][i]}, {vSg}, {acc[k][i]}")
        a("s_waitcnt lgkmcnt(0)\ns_nop 0")
        half(0, rds(1, c), c == 0)
    a("s_waitcnt lgkmcnt(0)")
    half(1, [])
    ST(3)
    tagready()
    pub = bX[0][0:2]; augX = bX[0][4:8]; augF = bX[1][0:4]; rs = bF[0]
    a(f"""
    v_bfi_b32 {vU[0]}, {vBit[0]}, {vU[1]}, {vU[0]}
    v_bfi_b32 {vU[2]}, {vBit[0]}, {vU[3]}, {vU[2]}
    v_bfi_b32 {vU[0]}, {vBit[1]}, {vU[2]}, {vU[0]}
    v_cndmask_b32 {vS1[0]}, {vS1[1]}, {vS1[0]}, {sMk2}
    v_mov_b32 {vU[1]}, {vU[0]}
    s_nop 1
    v_permlane32_swap_b32 {vU[0]}, {vU[1]}
    s_nop 0
    v_add_f32 {vU[0]}, {vU[0]}, {vU[1]}
    """)
    row_stats_finish(a, vS1[0], vU[0], vT0, vU[2], vU[3])
    a(f"""
    v_rcp_f32 {vT2}, {vU[3]}
    v_lshrrev_b32 {vT1}, 16, {vU[2]}
    v_or_b32 {pub[0]}, {vT1}, {vU[3]}
    v_mov_b32 {pub[1]}, {sTag}
    v_cndmask_b32 {augX[0]}, 0, {vT1}, vcc
    s_lshl_b32 {sT0}, {sW}, 7
    s_add_u32 {sT0}, {sT0}, {RS_OFF}
    v_lshl_add_u32 {vT0}, {vN1}, 2, {sT0}
    ds_write_b32 {vT0}, {vT2}
    v_lshl_add_u32 {vT0}, {vH}, 4, {sT0}
    """)
    for i in range(4): a(f"ds_read_b128 {rs[4*i:4*i+4]}, {vT0} offset:{32*i}")
    a(f"""
    s_lshl_b32 {sT0}, {sJ}, 6
    s_add_u32 {sT0}, {sT0}, {sN2}
    s_lshl_b32 {sT0}, {sT0}, 8
    s_cmp_lg_u32 {sM}, 5
    s_cselect_b32 {sT0}, {C.BIG}, {sT0}
    v_lshl_add_u32 {vT0}, {vL}, 3, {sT0}
    s_mov_b32 exec_hi, 0
    buffer_store_dwordx2 {pub}, {vT0}, {r1}, 0 offen sc1
    s_mov_b32 exec_hi, -1
    v_mov_b32 {vT2}, 0xc3a0
    v_cndmask_b32 {augF[0]}, 0, {vT2}, {sMask}
    """)
    for i in range(1, 4): a(f"v_mov_b32 {augX[i]}, 0\nv_mov_b32 {augF[i]}, 0")
    a(f"s_nop 1\n{MF32} {acc[0]}, {augX}, {augF}, {acc[0]}\n{MF32} {acc[2]}, {augX}, {augF}, {acc[2]}\ns_waitcnt lgkmcnt(0)\n.p2align 3")
    for i in range(0, 16, 2): a(f"v_pk_mul_f32 {Rv[i:i+2]}, {Rv[i:i+2]}, {rs[i:i+2]}")
    for i in range(8): a(f"v_cvt_pk_bf16_f32 {Rv[i]}, {Rv[2*i]}, {Rv[2*i+1]}")
    for i in range(0, 16, 2):
        a(f"v_pk_fma_f32 {tt[i:i+2]}, {acc[3][i:i+2]}, {vMu}, {acc[1][i:i+2]}\nv_pk_fma_f32 {acc[3][i:i+2]}, {acc[1][i:i+2]}, {vMu}, {acc[3][i:i+2]} {NEG0}")
    for i in range(0, 16, 2):
        a(f"v_pk_add_f32 {acc[1][i:i+2]}, {acc[0][i:i+2]}, {acc[2][i:i+2]} {NEG1}\nv_pk_add_f32 {acc[0][i:i+2]}, {acc[0][i:i+2]}, {acc[2][i:i+2]}")
    cv = lambda t, src: [f"v_cvt_pk_bf16_f32 {B[8*t+i]}, {src[2*i]}, {src[2*i+1]}" for i in range(8)]
    mf = lambda t: [f"{MF32} {acc[t]}, {Rv[0:4]}, {B[8*t:8*t+4]}, 0", f"{MF32} {acc[t]}, {Rv[4:8]}, {B[8*t+4:8*t+8]}, {acc[t]}"]
    for l in cv(2, tt) + cv(0, acc[0])[0:2]: a(l)
    for l in weave(mf(2) + mf(0) + mf(1) + mf(3), (cv(0, acc[0])[2:] + cv(1, acc[1]) + cv(3, acc[3]), [4, 4, 4, 4, 4, 2, 0, 0]), (["s_nop 1", "s_nop 0"], [0, 0, 0, 0, 0, 2, 0, 0])): a(l)
    def rotate(Cc, Sn):
        a(f"v_mul_f32 {vT0}, {Cc}, {vRot[1]}\nv_mul_f32 {Cc}, {Cc}, {vRot[0]}\nv_fma_f32 {Cc}, -{Sn}, {vRot[1]}, {Cc}\nv_fma_f32 {Sn}, {Sn}, {vRot[0]}, {vT0}")
    a(f"s_mul_i32 {sT1}, {sN2}, {C.V_ROW}\ns_nop 9\ns_cmp_lg_u32 {sUnit}, 0\ns_cbranch_scc1 S_dgen")
    a(f"v_mov_b32 {vT1}, {acc[2][1]}\nv_mov_b32 {vT2}, {acc[3][1]}")
    rotate(vT1, vT2)
    for i in range(16):
        c_, s_ = (vT1, vT2) if i == 1 else (acc[2][i], acc[3][i])
        a(f"v_cvt_pk_bf16_f32 {tt[i]}, {c_}, {s_}")
    for k in (2, 3):
        for i in range(0, 16, 2): a(f"v_pk_mul_f32 {acc[k][i:i+2]}, {acc[k][i:i+2]}, {vMu}")
    for q in range(4): a(f"s_add_u32 {sT0}, {sT1}, {2*q*64*C.V_ROW}\nbuffer_store_dwordx4 {tt[4*q:4*q+4]}, {vO[2]}, {r0}, {sT0} offen sc1")
    a("S_dgen:")
    rotate(acc[0][1], acc[2][1]); rotate(acc[1][1], acc[3][1])
    for q in range(4):
        a(f"s_add_u32 {sT0}, {sT1}, {2*q*64*C.V_ROW}")
        for k in range(2):
            for i in range(4*q, 4*q + 4): a(f"v_cvt_pk_bf16_f32 {acc[k][i]}, {acc[k][i]}, {acc[2+k][i]}")
            a(f"buffer_store_dwordx4 {acc[k][4*q:4*q+4]}, {vO[k]}, {r0}, {sT0} offen sc1")
    ST(4)
    a(f"s_lshl_b32 {sCk}, {sUnit}, 6\ns_add_u32 {sCk}, {sCk}, {sN2}\ns_add_u32 {sCk}, {sCk}, {C.FV}\ns_lshl_b32 {sCk}, {sCk}, 7")
    V.release(mark); S.release(smark)
    VA = 0; XA = 32768; PO = 65536; WA = C.WA_OFF; QA = 3*C.P_GRP
    vH = V(); vR16 = V(); vG = V(); vStep = V(); vBase = V(); vK2 = V(); vA = V(); vA2 = V(); vFl = V(4); vFa = V(4)
    G = V(80); G10 = V(4); vGs = V(); vGk = V(); vGb = V(); GT = V(16)
    m3 = V.mark()
    vM = V(); vKd = V(); vPw = V(2); vRot = V(2); TAB = V(32); DAT = V(64); acc = [GT, V(16)]; Wf = [DAT[32:48], DAT[48:64]]; TMP = DAT
    sT, sKap, sTm, sX, sPo, sTl, sG0 = [S() for _ in range(7)]; sRet = S(2); sFn = S(2)
    def trig(lst, fn):
        done_ = set()
        for d, r, o in lst:
            if o and str(r) not in done_: a(f"v_fmamk_f32 {r}, {vStep}, {fhex(o)}, {vBase}"); done_.add(str(r))
        for d, r, o in lst: a(fn(d, r if o else vBase))
    cs_ = lambda d, r: f"v_cos_f32 {d[0]}, {r}\nv_sin_f32 {d[1]}, {r}"
    co_ = lambda d, r: f"v_cos_f32 {d}, {r}"
    a(f"""
    S_t2:
    s_lshr_b32 {sT}, s2, 3
    s_sub_u32 {sT}, {sT}, 20
    s_lshr_b32 {sTm}, {sW}, 2
    v_lshrrev_b32 {vH}, 5, {vL}
    v_and_b32 {vR16}, 15, {vL}
    v_lshrrev_b32 {vG}, 4, {vL}
    s_and_b32 {sKap}, s2, 7
    s_lshl_b32 {sKap}, {sKap}, 1
    s_add_u32 {sKap}, {sKap}, {sTm}
    v_and_b32 {vM}, 31, {vL}
    v_lshrrev_b32 {vT0}, 1, {vM}
    s_lshl_b32 {sT0}, {sQ}, 4
    v_add_u32 {vT0}, {sT0}, {vT0}
    v_cvt_f32_u32 {vStep}, {vT0}
    v_lshlrev_b32 {vPw[0]}, 8, {vT0}
    v_mul_f32 {vT2}, {fhex(1/128)}, {vStep}
    v_and_b32 {vT0}, 1, {vM}
    v_cos_f32 {vRot[0]}, {vT2}
    v_sin_f32 {vRot[1]}, -{vT2}
    v_lshlrev_b32 {vT1}, 31, {vT0}
    v_xor_b32 {vRot[1]}, {vT1}, {vRot[1]}
    v_lshl_add_u32 {vT1}, {vH}, 1, {vT0}
    s_lshr_b32 {sT0}, {sKap}, 1
    s_and_b32 {sT0}, {sT0}, 2
    v_xor_b32 {vT1}, {sT0}, {vT1}
    v_and_b32 {vT2}, 6, {vM}
    v_xor_b32 {vT1}, {vT1}, {vT2}
    v_lshl_add_u32 {vPw[0]}, {vT1}, 4, {vPw[0]}
    s_lshl_b32 {sX}, {sTm}, 14
    s_add_u32 {sT0}, {sX}, {PO}
    v_add_u32 {vPw[0]}, {sT0}, {vPw[0]}
    v_xor_b32 {vPw[1]}, 64, {vPw[0]}
    s_add_u32 {sX}, {sX}, {XA}
    v_lshlrev_b32 {vT1}, 1, {vH}
    v_mul_f32 {vStep}, {fhex(-1/64)}, {vStep}
    v_cvt_f32_u32 {vT0}, {vT0}
    v_cvt_f32_u32 {vT1}, {vT1}
    v_mul_f32 {vT2}, {fhex(8.0)}, {vStep}
    v_mul_f32 {vBase}, {fhex(0.25)}, {vT0}
    v_cos_f32 {vT2}, {vT2}
    v_fmac_f32 {vBase}, {vT1}, {vStep}
    v_add_f32 {vK2}, {vT2}, {vT2}
    """)
    st = [[DAT[8*k+2*i:8*k+2*i+2] for i in range(4)] for k in range(2)]
    trig([(st[s][jj], st[s][jj][1], 8*s + (jj % 2) + 4*(jj // 2)) for s in range(2) for jj in range(4)], cs_)
    for s in range(8):
        if s >= 2:
            for jj in range(8): a(f"v_fma_f32 {DAT[8*(s%2)+jj]}, {DAT[8*(1-s%2)+jj]}, {vK2}, -{DAT[8*(s%2)+jj]}")
        for jj in range(4): a(f"v_cvt_pk_bf16_f32 {TAB[4*s+jj]}, {st[s%2][jj][0]}, {st[s%2][jj][1]}")
    a(f"s_cmp_ge_u32 {sW}, 4\ns_cbranch_scc1 S_nofl\ns_waitcnt vmcnt(0)")
    flag(sCk)
    a(f"""
    S_nofl:
    s_sub_u32 {sTl}, {sM}, 5
    s_mul_i32 {sTl}, {sTl}, 7
    s_min_u32 {sT0}, {sW}, 6
    s_add_u32 {sTl}, {sTl}, {sT0}
    s_min_u32 {sTl}, {sTl}, 19
    s_lshl_b32 {sT2}, {sTl}, 4
    v_add_u32 {vT0}, {sT2}, {vR16}
    v_cvt_f32_u32 {vGs}, {vT0}
    v_mul_f32 {vT0}, {fhex(32/640)}, {vGs}
    v_mul_f32 {vGs}, {fhex(1/640)}, {vGs}
    v_cos_f32 {vT0}, {vT0}
    v_and_b32 {vT1}, 1, {vG}
    v_add_f32 {vGk}, {vT0}, {vT0}
    v_cvt_f32_u32 {vT1}, {vT1}
    v_lshlrev_b32 {vT0}, 3, {vH}
    v_cvt_f32_u32 {vT0}, {vT0}
    v_mul_f32 {vT1}, {fhex(0.25)}, {vT1}
    v_fma_f32 {vGb}, {vT0}, {vGs}, {vT1}
    v_cmp_eq_u32 {sMask}, 0, {vG}
    """)
    def ggen(p, TMP):
        a(f"v_mov_b32 {vStep}, {vGs}\nv_mov_b32 {vBase}, {vGb}\ns_mov_b32 vcc_lo, 0\ns_mov_b32 vcc_hi, -1")
        for kh in range(2):
            k0 = (162 - p) if kh else p
            trig([(TMP[8*w+j], TMP[8*w+j], k0 + 32*w + 2*(j % 4) + 16*(j // 4)) for w in range(2) for j in range(8)], co_)
            for w in range(5):
                cur = TMP[8*(w%2):8*(w%2)+8]
                if w >= 2:
                    for j in range(8): a(f"v_fma_f32 {cur[j]}, {TMP[8*(1-w%2)+j]}, {vGk}, -{cur[j]}")
                for i in range(4):
                    lo, up = cur[2*i], cur[2*i+1]
                    if (p, kh, w, i) == (0, 0, 0, 0): a(f"v_cndmask_b32 {vT0}, {lo}, 0.5, {sMask}"); lo = vT0
                    if (p, kh, w, i) == (0, 1, 4, 3): a(f"v_mul_f32 {vT0}, 0.5, {up}\nv_cndmask_b32 {vT0}, {up}, {vT0}, vcc"); up = vT0
                    a(f"v_cvt_pk_bf16_f32 {G[40*p+20*kh+4*w+i]}, {lo}, {up}")
    ncall = [0]
    def gcall(p, team):
        ncall[0] += 1; n = ncall[0]
        a(f"s_cmp_lg_u32 {sTm}, {team}\ns_cbranch_scc1 S_gs{n}")
        if team: a(f"s_cmp_eq_u32 {sW}, 7\ns_cbranch_scc1 S_gs{n}")
        a(f"s_call_b64 {sRet}, S_gfn{p}\nS_gs{n}:")
    gcall(0, 1); gcall(1, 1)
    def w2touch():
        a.srd(r0, pW2[0], pW2[1], C.W2_BYTES)
        a(f"""
        s_lshl_b32 {sT0}, {sT}, 3
        s_add_u32 {sT0}, {sT0}, {sW}
        s_add_u32 {sT0}, {sT0}, 64
        s_mul_i32 {sT0}, {sT0}, {54*128}
        s_mul_i32 {sT1}, {sJ}, {864*1280}
        s_add_u32 {sT0}, {sT0}, {sT1}
        v_min_u32 {vT0}, 53, {vL}
        v_lshlrev_b32 {vT0}, 7, {vT0}
        buffer_load_dword {vPf}, {vT0}, {r0}, {sT0} offen
        """)
    a(f"s_cmp_ge_u32 {sT}, 11\ns_cbranch_scc1 S_not2")
    a.srd_off(r2, pWS, C.WS_V, C.V_BYTES)
    a(f"""
    s_cmp_gt_u32 {sT}, 5
    s_cselect_b32 {sT0}, 1, 0
    v_and_b32 {vT1}, 1, {vG}
    v_xor_b32 {vT1}, {sT0}, {vT1}
    v_lshl_add_u32 {vKd}, {vR16}, 1, {vT1}
    s_sub_u32 {sT0}, 10, {sT}
    s_cmp_eq_u32 {sT}, 5
    s_cselect_b32 {sT0}, 0, {sT0}
    s_min_u32 {sT0}, {sT0}, {sT}
    s_lshl_b32 {sT0}, {sT0}, 6
    s_add_u32 {sT0}, {sT0}, {C.FV}
    v_add_lshl_u32 {vA2}, {vL}, {sT0}, 7
    v_mul_u32_u24 {vT1}, {C.V_ROW-512}, {vH}
    v_add_u32 {vT1}, {vT1}, {vL16}
    s_cmp_eq_u32 {sT}, 5
    s_cselect_b32 {sT0}, 8, 32
    v_cmp_gt_u32 vcc, {sT0}, {vM}
    v_mov_b32 {vT0}, {C.BIG}
    s_nop 0
    v_cndmask_b32 {vT1}, {vT0}, {vT1}, vcc
    s_and_b32 {sT0}, s2, 7
    s_lshl_b32 {sT0}, {sT0}, 3
    s_add_u32 {sT0}, {sT0}, {sW}
    s_mul_i32 {sT0}, {sT0}, {8*C.V_ROW}
    s_lshl_b32 {sT1}, {sT}, 9
    s_add_u32 {sT0}, {sT0}, {sT1}
    s_lshl_b32 m0, {sW}, 12
    """)
    ST(5)
    a(f"s_cmp_lg_u32 {sW}, {vpw}\ns_cbranch_scc1 S_vp_ok")
    if vpre: a(f"s_sleep {vpre}")
    poll("S_vp", [vA2], vFl, nap)
    a("s_barrier")
    ST(1, 3)
    for i in range(4): a(f"s_add_u32 {sT1}, {sT0}, {i*(2*C.V_ROW-1024)}\nbuffer_load_dwordx4 {vT1}, {r2}, {sT1} offen offset:{1024*i} sc1 lds")
    a.srd(r0, pWr[0], pWr[1], C.W_BYTES)
    a.srd(r1, pWi[0], pWi[1], C.W_BYTES)
    a(f"""
    s_lshl_b32 {sT2}, {sT}, 6
    s_cmp_gt_u32 {sT}, 5
    s_cselect_b32 {sT1}, 62, 0
    s_sub_u32 {sT2}, {sT2}, {sT1}
    s_lshl_b32 {sT0}, {sW}, 12
    s_add_u32 m0, {sT0}, {WA}
    s_sub_u32 {sT0}, 0, {sKap}
    s_cmp_eq_u32 {sKap}, 0
    s_cselect_b32 {sT0}, 16, {sT0}
    s_lshl_b32 {sT1}, {sQ}, 9
    s_add_u32 {sT0}, {sT0}, {sT1}
    s_add_u32 {sT1}, {sT1}, {sKap}
    v_lshrrev_b32 {vT1}, 2, {vL}
    v_and_b32 {vT2}, 48, {vL16}
    v_lshl_add_u32 {vA}, {vT1}, 5, {sT1}
    v_lshl_add_u32 {vA2}, {vT1}, 5, {sT0}
    v_and_b32 {vA2}, 2047, {vA2}
    v_mul_u32_u24 {vA}, 642, {vA}
    v_mul_u32_u24 {vA2}, 642, {vA2}
    v_add_u32 {vA}, {vA}, {vT2}
    v_add_u32 {vA2}, {vA2}, {vT2}
    """)
    gcall(0, 0)
    for i in range(4): a(f"buffer_load_dwordx4 {vA2 if i // 2 else vA}, {r1 if i % 2 else r0}, {sT2} offen lds\ns_add_u32 m0, m0, 1024\ns_nop 0")
    a.srd_off(r2, pWS, C.WS_P, C.P_BYTES)
    a(f"""
    v_lshlrev_b32 {vA}, 4, {vKd}
    v_lshl_add_u32 {vA}, {vH}, 10, {vA}
    s_lshl_b32 {sT0}, {sTm}, 3
    v_add_u32 {vA}, {sT0}, {vA}
    s_lshl_b32 {sT0}, {sW}, 12
    s_add_u32 {sT0}, {sT0}, {WA}
    v_lshl_add_u32 {vA2}, {vKd}, 1, {sT0}
    v_lshl_add_u32 {vA2}, {vH}, 7, {vA2}
    """)
    a("s_waitcnt vmcnt(4)\ns_barrier")
    ST(2, 3)
    vr = lambda s: [f"ds_read_b64 {DAT[8*(s%4)+2*p:8*(s%4)+2*p+2]}, {vA} offset:{(8*s + (0, 4, 1, 5)[p])*512}" for p in range(4)]
    sw = lambda s: [f"v_swap_b32 {DAT[8*(s%4)+1]}, {DAT[8*(s%4)+4]}", f"v_swap_b32 {DAT[8*(s%4)+3]}, {DAT[8*(s%4)+6]}"]
    wr = [f"ds_read_u16_d16_hi {Wf[sg][2*e+ar]}, {vA2} offset:{2048*sg + 1024*ar + 64*((e%2) + 4*(e//2))}" for e in range(8) for sg in range(2) for ar in range(2)]
    for s in range(3):
        for l in vr(s): a(l)
    a("s_waitcnt lgkmcnt(8)")
    for l in sw(0): a(l)
    for s in range(8):
        if s < 7:
            a(f"s_waitcnt lgkmcnt({4*min(1, 6-s)})")
            for l in sw(s + 1) + (vr(s + 3) if s + 3 < 8 else []): a(l)
        for sg in range(2):
            a(f"{MF32} {acc[sg]}, {TAB[4*s:4*s+4]}, {DAT[8*(s%4)+4*sg:8*(s%4)+4*sg+4]}, {acc[sg] if s else 0}")
            if s == 6 and sg == 0: a("s_waitcnt vmcnt(0)")
            if s >= 6:
                for l in wr[[0, 12, 24, 32][2*(s-6)+sg]:[12, 24, 32, 32][2*(s-6)+sg]]: a(l)
    tm = [DAT[2*i:2*i+2] for i in range(6)]; out = [DAT[16:24], DAT[24:32]]
    def cmul(y, x, w):
        return [f"v_pk_mul_f32 {y}, {x}, {w} op_sel_hi:[0,1]", f"v_pk_fma_f32 {y}, {x}, {w}, {y} op_sel:[1,1,0] op_sel_hi:[1,0,1] neg_hi:[0,1,0]"]
    a(f"""
    v_cmp_eq_u32 vcc, 0, {vKd}
    v_add_u32 {vA2}, {sX}, {vL16}
    s_lshl_b32 {sT0}, {sQ}, 11
    v_add_u32 {vA}, {sT0}, {vA2}
    s_nop 11
    s_barrier
    s_waitcnt lgkmcnt(0)
    s_cmp_eq_u32 {sKap}, 0
    s_cbranch_scc1 S_mid0
    """)
    for e in range(8):
        A_, B_ = acc[0][2*e:2*e+2], acc[1][2*e:2*e+2]
        a(f"v_pk_add_f32 {tm[0]}, {A_}, {B_} op_sel:[0,1] op_sel_hi:[1,0] neg_lo:[0,1]")
        a(f"v_pk_add_f32 {tm[1]}, {A_}, {B_} op_sel:[0,1] op_sel_hi:[1,0] neg_hi:[0,1]")
        m1 = cmul(tm[2], tm[0], Wf[0][2*e:2*e+2]); m2 = cmul(tm[3], tm[1], Wf[1][2*e:2*e+2])
        a("\n".join([m1[0], m2[0], m1[1], m2[1]]))
        a(f"v_pk_add_f32 {tm[4]}, {tm[2]}, {tm[3]}")
        a(f"v_pk_add_f32 {tm[5]}, {tm[2]}, {tm[3]} neg_lo:[0,1] neg_hi:[0,1]")
        a(f"v_cvt_pk_bf16_f32 {out[0][e]}, {tm[4][0]}, {tm[4][1]}\nv_cvt_pk_bf16_f32 {out[1][e]}, {tm[5][1]}, -{tm[5][0]}")
    a("s_branch S_mide\nS_mid0:")
    for e in range(8):
        m1 = cmul(tm[2], acc[0][2*e:2*e+2], Wf[0][2*e:2*e+2]); m2 = cmul(tm[3], acc[1][2*e:2*e+2], Wf[1][2*e:2*e+2])
        a("\n".join([m1[0], m2[0], m1[1], m2[1]]))
        a(f"v_cvt_pk_bf16_f32 {out[0][e]}, {tm[2][0]}, {tm[2][1]}\nv_cvt_pk_bf16_f32 {out[1][e]}, {tm[3][0]}, {tm[3][1]}")
    a(f"S_mide:\ns_cmp_lg_u32 {sT}, 5\ns_cbranch_scc1 S_nomask")
    for i in range(16): a(f"v_cndmask_b32 {DAT[16+i]}, 0, {DAT[16+i]}, vcc")
    a("S_nomask:")
    for sg in range(2):
        for e in range(2): a(f"ds_write_b128 {vA}, {out[sg][4*e:4*e+4]} offset:{8192*sg + 1024*e}")
    a("s_waitcnt lgkmcnt(0)\ns_barrier")
    ST(3, 3)
    fr = lambda sg, s: DAT[8*s+4*sg:8*s+4*sg+4]
    xr = lambda s: [f"ds_read_b128 {fr(sg, s)}, {vA2} offset:{8192*sg + 1024*s}" for sg in range(2)]
    for s in range(7):
        for l in xr(s): a(l)
    for s in range(8):
        a(f"s_waitcnt lgkmcnt({min(12, 14 - 2*s)})")
        for sg in range(2): a(f"{MF32} {acc[sg]}, {fr(sg, s)}, {TAB[4*s:4*s+4]}, {acc[sg] if s else 0}")
        if s == 0:
            for l in xr(7): a(l)
    a(f"""
    v_lshrrev_b32 {vT0}, 4, {vL}
    v_lshlrev_b32 {vT2}, 5, {vT0}
    v_xor_b32 {vA}, {vT2}, {vL16}
    s_lshl_b32 {sT0}, {sW}, 12
    s_add_u32 {sT0}, {sT0}, {PO}
    v_add_u32 {vA}, {sT0}, {vA}
    v_mul_u32_u24 {vA2}, {C.P_GRP}, {vT0}
    v_bfe_u32 {vT0}, {vL}, 3, 1
    v_mul_u32_u24 {vT0}, {11*2048}, {vT0}
    v_and_b32 {vT2}, 0x70, {vL16}
    v_add3_u32 {vA2}, {vA2}, {vT0}, {vT2}
    s_cmp_gt_u32 {sT}, 5
    s_subb_u32 {sPo}, {sT}, 0
    s_cmp_eq_u32 {sT}, 5
    s_cselect_b32 {sPo}, 10, {sPo}
    s_lshl_b32 {sPo}, {sPo}, 4
    s_add_u32 {sPo}, {sPo}, {sKap}
    s_lshl_b32 {sPo}, {sPo}, 7
    s_mul_i32 {sT0}, {sQ}, {16*C.P_GRP}
    s_add_u32 {sPo}, {sPo}, {sT0}
    s_cmp_lg_u32 {sKap}, 0
    s_cbranch_scc1 S_norot
    """)
    for i in range(16): a(f"v_mul_f32 {DAT[i]}, {acc[1][i]}, {vRot[0]}")
    for i in range(16): a(f"v_fmac_f32_dpp {DAT[i]}, {acc[1][i]}, {vRot[1]} quad_perm:[1,0,3,2] row_mask:0xf bank_mask:0xf")
    for i in range(16): a(f"v_mov_b32 {acc[1][i]}, {DAT[i]}")
    a("S_norot:")
    for sg in range(2):
        for i in range(8): a(f"v_cvt_pk_bf16_f32 {acc[sg][i]}, {acc[sg][2*i]}, {acc[sg][2*i+1]}")
        for p in range(2): a(f"ds_write_b128 {vPw[sg]}, {acc[sg][4*p:4*p+4]} offset:{128*p}")
    for i in range(4): a(f"ds_read_b128 {DAT[4*i:4*i+4]}, {vA} offset:{1024*i}")
    for i in range(4):
        a(f"s_waitcnt lgkmcnt({3-i})\nbuffer_store_dwordx4 {DAT[4*i:4*i+4]}, {vA2}, {r2}, {sPo} offen sc1\ns_add_u32 {sPo}, {sPo}, {4*C.P_GRP}")
    ST(4, 3)
    a(f"""
    s_and_b32 {sT0}, s2, 7
    s_mul_i32 {sT0}, {sT0}, 11
    s_add_u32 {sT0}, {sT0}, {sT}
    s_add_u32 {sT0}, {sT0}, {C.FP}
    s_lshl_b32 {sT0}, {sT0}, 7
    s_cmp_lg_u32 {sW}, 0
    s_cselect_b32 {sT0}, {C.BIG}, {sT0}
    s_waitcnt vmcnt(0)
    s_barrier
    """)
    flag(sT0)
    ST(6)
    a("s_branch S_t3\nS_not2:")
    gcall(0, 0)
    a(f"""
    s_sub_u32 {sT0}, s2, {sW}
    s_cmp_lg_u32 {sT0}, 255
    s_cbranch_scc1 S_t3
    v_lshlrev_b32 {vT1}, 7, {vL}
    """)
    for i in range(4): a(f"v_add_u32 {vFa[i]}, {8192*i}, {vT1}")
    poll("S_ep", [vFa[i] for i in range(4)], vFl, 8)
    a(f"s_mov_b32 {sT0}, {C.FE*128}")
    flag(sT0)
    V.release(m3)
    vOx = V(); vYo = V(); Rf = V(16); XB = V(24); TMP = GT; acc = V(16); buf = V(48); D = V(16)
    sXo, sBo = sT, sKap
    PS = C.P_GRP
    a(f"""
    S_t3:
    s_lshl_b32 {sG0}, {sRb}, 1
    s_add_u32 {sG0}, {sG0}, {sJ}
    s_lshl_b32 {sG0}, {sG0}, 1
    """)
    a.srd_off(r2, pWS, C.WS_P, C.P_BYTES)
    a.srd_off(r0, pWS, C.WS_Y, C.Y_BYTES)
    a(f"""
    v_add_u32 {vT0}, {C.FP}, {vL}
    v_lshlrev_b32 {vFa[0]}, 7, {vT0}
    v_min_u32 {vT0}, 23, {vL}
    v_add_u32 {vT0}, {C.FP + 64}, {vT0}
    v_lshlrev_b32 {vFa[1]}, 7, {vT0}
    v_mov_b32 {vYo}, {C.BIG}
    v_mov_b32 {vOx}, {C.BIG}
    v_mov_b32 {vA}, 0
    s_mov_b32 {sPo}, 0
    s_cmp_eq_u32 {sW}, 7
    s_cbranch_scc1 S_ppw
    """)
    gcall(1, 0)
    a(f"""
    v_add_u32 {vT0}, {vR16}, {vG}
    v_cvt_f32_u32 {vT0}, {vT0}
    v_mul_f32 {vT0}, {fhex(0.25)}, {vT0}
    v_cos_f32 {vT0}, {vT0}
    s_mov_b32 vcc_lo, -1
    s_mov_b32 vcc_hi, 0
    v_cvt_pk_bf16_f32 {vT0}, {vT0}, 0
    v_cndmask_b32 {G10[0]}, 0, {vT0}, vcc
    v_mov_b32 {G10[1]}, 0
    v_mov_b32 {G10[2]}, 0
    v_mov_b32 {G10[3]}, 0
    v_lshlrev_b32 {vT2}, 31, {vR16}
    v_or_b32 {vT2}, 1.0, {vT2}
    v_lshlrev_b32 {vK2}, 1, {vG}
    v_cvt_f32_u32 {vK2}, {vK2}
    """)
    sc = 2.0 / (2048 * 640)
    for rd in range(2):
        for nu in range(2):
            a(f"""
            s_add_u32 {sT0}, {sG0}, {rd + 1024*nu}
            v_lshl_add_u32 {vT0}, {vR16}, 6, {sT0}
            v_cvt_f32_u32 {vStep}, {vT0}
            v_mul_f32 {vStep}, {fhex(-1/2048)}, {vStep}
            v_mul_f32 {vBase}, {vK2}, {vStep}
            """)
            trig([(TMP[2*i:2*i+2], TMP[2*i+1], 8*(i // 2) + (i % 2)) for i in range(4)], cs_)
            a(f"v_cndmask_b32 {TMP[1]}, {TMP[1]}, {vT2}, {sMask}")
            for i in range(8): a(f"v_mul_f32 {TMP[i]}, {fhex(sc)}, {TMP[i]}")
            for i in range(4): a(f"v_cvt_pk_bf16_f32 {Rf[8*rd+4*nu+i]}, {TMP[2*i]}, {TMP[2*i+1]}")
    a(f"""
    v_lshrrev_b32 {vT0}, 1, {vR16}
    v_lshlrev_b32 {vT0}, 7, {vT0}
    v_lshrrev_b32 {vT1}, 2, {vR16}
    v_and_b32 {vT1}, 2, {vT1}
    v_xor_b32 {vT1}, {vT1}, {vG}
    v_lshl_add_u32 {vT0}, {vT1}, 4, {vT0}
    v_and_b32 {vT1}, 1, {vR16}
    v_lshl_add_u32 {vA}, {vT1}, 6, {vT0}
    s_lshr_b32 {sT0}, {sTl}, 2
    s_mul_i32 {sPo}, {sG0}, 5
    s_add_u32 {sPo}, {sPo}, {sT0}
    s_lshl_b32 {sPo}, {sPo}, 3
    s_and_b32 {sT0}, {sTl}, 3
    s_add_u32 {sPo}, {sPo}, {sT0}
    s_mul_i32 {sPo}, {sPo}, 1536
    s_sub_u32 {sT0}, {sM}, 5
    s_mul_i32 {sT0}, {sT0}, 7
    s_add_u32 {sT0}, {sT0}, {sW}
    s_cmp_eq_u32 {sT0}, {sTl}
    s_cselect_b32 {sT0}, 0, {C.BIG}
    v_or_b32 {vYo}, {sT0}, {vL16}
    v_lshlrev_b32 {vOx}, 3, {vL}
    v_or_b32 {vOx}, {sT0}, {vOx}
    s_branch S_pp_ok
    S_ppw:
    """)
    if ppre: a(f"s_sleep {ppre}")
    poll("S_pp", [vFa[0], vFa[1]], vFl, nap)
    a("s_waitcnt vmcnt(0)\ns_barrier")
    ST(7)
    a(f"s_mul_i32 {sT0}, {sW}, 6144\ns_cmp_eq_u32 {sW}, 7\ns_cselect_b32 m0, {PS}, {sT0}\ns_cselect_b32 {sC}, 7, 1\ns_mul_i32 {sT1}, {sG0}, {PS}\ns_add_u32 {sT0}, {sT1}, m0")
    a(f"s_cmp_lg_u32 {sW}, 7\ns_cbranch_scc1 S_pl\ns_barrier\nS_pl:")
    for i in range(6):
        a(f"buffer_load_dwordx4 {vL16}, {r2}, {sT0} offen offset:{1024*(i%4)} sc1 lds")
        if i in (3, 5): a(f"s_add_u32 m0, m0, {4096 if i == 3 else 2048}\ns_add_u32 {sT0}, {sT0}, {4096 if i == 3 else 2048}")
    a(f"s_sub_u32 {sC}, {sC}, 1\ns_cmp_lg_u32 {sC}, 0\ns_cbranch_scc1 S_pl")
    a(f"s_cmp_lg_u32 {sW}, 7\ns_cbranch_scc1 S_pw\ns_barrier\ns_waitcnt vmcnt(0)\ns_barrier")
    done()
    a("S_pw:\ns_barrier")
    for i in range(4): a(f"v_mov_b32 {XB[6*i+3]}, {sTag}\nv_mov_b32 {XB[6*i+5]}, {sTag}")
    for rd in range(2):
        a("s_waitcnt vmcnt(0)\ns_barrier" if rd == 0 else "s_barrier")
        ST(5 + rd, 3)
        steps = [(0, 10)] + [(p, b) for b in range(10) for p in range(2)]
        rdl = lambda k: [f"ds_read_b128 {buf[8*(k%6)+4*rho:8*(k%6)+4*rho+4]}, {vA} offset:{(11*steps[k][0] + steps[k][1])*2048 + 1024*rho}" for rho in range(2)]
        for k in range(5):
            for l in rdl(k): a(l)
        for k, (p, b) in enumerate(steps):
            if k + 5 < 21:
                for l in rdl(k + 5): a(l)
            a(f"s_waitcnt lgkmcnt({2*min(5, 20-k)})")
            for rho in range(2):
                ac = acc[8*p+4*rho:8*p+4*rho+4]
                a(f"{MF16} {ac}, {buf[8*(k%6)+4*rho:8*(k%6)+4*rho+4]}, {G10 if b == 10 else G[40*p+4*b:40*p+4*b+4]}, {0 if k in (0, 2) else ac}")
        a(f"v_add_u32 {vA}, {PS}, {vA}\ns_nop 8")
        for i in range(8): a(f"v_add_f32 {TMP[i]}, {acc[i]}, {acc[8+i]}\nv_sub_f32 {TMP[8+i]}, {acc[i]}, {acc[8+i]}")
        for i in range(8): a(f"v_cvt_pk_bf16_f32 {TMP[i]}, {TMP[2*i]}, {TMP[2*i+1]}")
        a("s_nop 1")
        for sg in range(2):
            for nu in range(2): a(f"{MF16} {D[8*sg+4*nu:8*sg+4*nu+4]}, {TMP[4*sg:4*sg+4]}, {Rf[8*rd+4*nu:8*rd+4*nu+4]}, 0")
        a(f"v_nop\ns_nop 7\ns_add_u32 {sT1}, {sPo}, {4*1536}")
        for sg in range(2):
            o = XB[12*rd+6*sg:12*rd+6*sg+6]
            for i in range(4): a(f"v_cvt_pk_bf16_f32 {o[i + i//3]}, {D[8*sg+2*i]}, {D[8*sg+2*i+1]}")
            a(f"buffer_store_dwordx4 {o[0:4]}, {vYo}, {r0}, {sT1 if sg else sPo} offen sc1\nbuffer_store_dwordx2 {o[4:6]}, {vOx}, {r0}, {sT1 if sg else sPo} offen offset:1024 sc1")
        a(f"s_add_u32 {sPo}, {sPo}, {40*1536}")
    a(f"s_lshl_b32 {sT0}, {sG0}, 4\ns_add_u32 {sT0}, {sT0}, {sTl}\ns_add_u32 {sT0}, {sT0}, {C.FY}\ns_lshl_b32 {sT0}, {sT0}, 7")
    a(f"v_or_b32 {vT0}, {sT0}, {vYo}\ns_mov_b64 exec, 1\nbuffer_store_dword {vTag}, {vT0}, {rF}, 0 offen sc1\ns_mov_b64 exec, -1")
    ST(7, 3)
    done()
    for p in range(2):
        a(f"S_gfn{p}:")
        ggen(p, GT)
        a(f"s_setpc_b64 {sRet}")
```

```python
from asmlib import *
import math
from k1 import weave, row_stats_finish, MF32, MF16, MF4
X_BYTES, W1_BYTES, W_BYTES, W2_BYTES = 2048*1280, 640*3456, 2048*642, 1728*1280
H_BYTES = 64*54*2048
V_ROW = 5632; V_BYTES = 8*64*V_ROW
P_GRP = 22*2048; P_BYTES = 64*P_GRP
ZW = 5632; Z_BYTES = 160*4*ZW
Y_BYTES = 64*40*1536
ST_BYTES = 2*64*256; CS_BYTES = 27*1024
FS, FH, FV, FP, FY, FE = 0, 256, 256+576, 256+576+320, 256+576+320+88, 256+576+320+88+1024
FL_BYTES = (FE + 1)*128
WS_H = 0; WS_V = 0x6C0000; WS_P = 0x980000; WS_Z = 0xC40000; WS_Y = 0xFC0000; WS_ST = 0x1380000; WS_CS = 0x1390000; WS_FL = 0x13A0000
TAG_STEP = 0x9E3779B9; SPIN_MAX = 1 << 17
S1 = 40960; S2 = 49152
XL_OFF = 3*S2
LDS = XL_OFF + 16384
WA_OFF = 114688
BIG = 0x7f000000
NEG2 = "neg_lo:[0,0,1] neg_hi:[0,0,1]"

def gen(stamp=False, rot=(2, 20, 5, 10), fine=0, local=0, thr=1, nap=4, hpre=0, vpw=7, ntouch=2, wthr=4, zw=0, ppre=4, ynap=2, osc='', nt1=9, vpre=20, dsl=(0, 0, 10)):
    a = Asm("S"); ST0 = Stamps(a, 1, stamp)
    def ST(k, f=0):
        if k == 0 or f == fine: ST0(k)
    kname = NAME + "_kernel"
    S = Alloc('s', 24, 72); V = Alloc('v', 1, 256)
    pX, pWr, pWi, pW1, pB1, pW2, pB2, pOut, pWS = [Reg('s', b, 2) for b in (4, 6, 8, 12, 14, 16, 18, 20, 22)]
    r0 = S(4); r1 = S(4); r2 = S(4); rF = S(4)
    sW, sQ, sJ, sRb, sM, sTag, sCk, sT0, sT1, sT2, sC = [S() for _ in range(11)]
    sMask = S(2)
    vL = V(); vL16 = V(); vT0 = V(); vT1 = V(); vT2 = V(); vTag = V(); vPf = V()
    def done():
        ST0.flush(pWS, sW); a("s_endpgm")
    def flag(addr, fl="sc1"):
        a(f"v_mov_b32 {vT0}, {addr}\ns_mov_b64 exec, 1\nbuffer_store_dword {vTag}, {vT0}, {rF}, 0 offen {fl}\ns_mov_b64 exec, -1")
    def poll(lab, addrs, tmp, nap_):
        a(f"s_mov_b32 {sC}, 0\n{lab}:")
        for i, ad in enumerate(addrs): a(f"buffer_load_dword {tmp[i]}, {ad}, {rF}, 0 offen sc1")
        a(f"s_add_u32 {sC}, {sC}, 1\ns_waitcnt vmcnt(0)")
        for i in range(len(addrs)): a(f"v_xor_b32 {tmp[i]}, {tmp[i]}, {vTag}")
        for i in range(1, len(addrs)): a(f"v_or_b32 {tmp[0]}, {tmp[0]}, {tmp[i]}")
        a(f"""
        v_cmp_ne_u32 vcc, 0, {tmp[0]}
        s_cmp_ge_u32 {sC}, {SPIN_MAX}
        s_cbranch_scc1 {lab}_ok
        s_cbranch_vccz {lab}_ok
        s_sleep {nap_}
        s_branch {lab}
        {lab}_ok:
        """)
    def tagready():
        a(f"s_add_u32 {sTag}, {sTag}, {TAG_STEP}\nv_mov_b32 {vTag}, {sTag}")
    a("s_cmp_lt_u32 s2, 256\ns_cbranch_scc1 S_go\ns_endpgm\nS_go:")
    ST(0); ST0.init()
    npz, A_, B_, C_ = rot
    a(f"""
    s_load_dwordx16 s[4:19], s[0:1], 0
    s_load_dwordx2 {pOut}, s[0:1], 64
    s_load_dwordx2 {pWS}, s[0:1], 80
    s_getpc_b64 {r2[0:2]}
    S_pc:
    s_sub_u32 {r2[0]}, {r2[0]}, S_pc-{kname}
    s_subb_u32 {r2[1]}, {r2[1]}, 0
    s_mov_b32 {r2[2]}, code_end-{kname}
    s_mov_b32 {r2[3]}, 0x20000
    s_lshr_b32 {sT0}, s2, 3
    s_lshl_b32 {sT0}, {sT0}, 7
    v_lshl_add_u32 {vT0}, v0, 12, {sT0}
    buffer_load_dword {vPf}, {vT0}, {r2}, 0 offen
    v_lshrrev_b32 {vT0}, 6, v0
    v_and_b32 {vL}, 63, v0
    v_readfirstlane_b32 {sW}, {vT0}
    v_lshlrev_b32 {vL16}, 4, {vL}
    s_and_b32 {sJ}, s2, 1
    s_bfe_u32 {sT0}, s2, 0x20001       ; i
    s_bfe_u32 {sT1}, s2, 0x20003
    s_lshl_b32 {sRb}, {sT0}, 2
    s_add_u32 {sRb}, {sRb}, {sT1}
    s_lshr_b32 {sM}, s2, 5
    s_add_u32 {sCk}, {sM}, {sT1}
    s_and_b32 {sCk}, {sCk}, {npz-1}
    s_mul_i32 {sCk}, {sCk}, {A_}
    s_mul_i32 {sC}, {sT0}, {B_}
    s_add_u32 {sCk}, {sCk}, {sC}
    s_mul_i32 {sC}, {sJ}, {C_}
    s_add_u32 {sCk}, {sCk}, {sC}
    s_lshr_b32 {sCk}, {sCk}, 2
    s_mul_i32 {sC}, {sCk}, 26
    s_lshr_b32 {sC}, {sC}, 8
    s_mul_i32 {sC}, {sC}, 10
    s_sub_u32 {sCk}, {sCk}, {sC}
    s_and_b32 {sQ}, {sW}, 3
    s_mul_i32 {sT0}, {sJ}, 3
    s_add_u32 {sT0}, {sT0}, 4
    s_cmp_eq_u32 {sM}, {sT0}
    s_cbranch_scc1 S_colsum
    s_cmp_lt_u32 {sW}, 4
    s_cbranch_scc1 S_comp1
    """)
    def common_after_kernarg():
        a.srd_off(rF, pWS, WS_FL, FL_BYTES)
        a(f"s_load_dword {sTag}, {rF[0:2]}, {FE*128}")
    mark = V.mark(); smark = S.mark()
    vOffA = V(4); vOffB = V(2); sSoA, sSoB, sMA, sMB = S(), S(), S(), S()
    a(f"""
    s_setprio 1
    v_lshrrev_b32 {vT0}, 3, {vL}
    v_mul_u32_u24 {vOffB[0]}, 3456, {vT0}
    v_mul_u32_u24 {vT0}, {64*1280}, {vT0}
    v_lshrrev_b32 {vT1}, 4, {vL}
    v_and_b32 {vT2}, 7, {vL}
    v_xor_b32 {vOffA[0]}, {vT1}, {vT2}
    v_lshl_add_u32 {vOffA[0]}, {vOffA[0]}, 4, {vT0}
    v_xor_b32 {vT0}, 64, {vOffA[0]}
    v_add_u32 {vOffA[1]}, {8*64*1280 - 1024}, {vT0}
    v_add_u32 {vOffA[2]}, {16*64*1280 - 2048}, {vOffA[0]}
    v_add_u32 {vOffA[3]}, {24*64*1280 - 3072}, {vT0}
    v_and_b32 {vT1}, 1, {vT1}
    v_lshlrev_b32 {vT1}, 1, {vT1}
    v_xor_b32 {vT1}, {vT1}, {vT2}
    v_lshl_add_u32 {vOffB[0]}, {vT1}, 4, {vOffB[0]}
    v_xor_b32 {vOffB[1]}, 64, {vOffB[0]}
    v_add_u32 {vOffB[1]}, {8*3456 - 1024}, {vOffB[1]}
    s_lshl_b32 {sT0}, {sRb}, 2
    s_add_u32 {sT0}, {sT0}, {sQ}
    s_mul_i32 {sSoA}, {sT0}, 1280
    s_lshl_b32 {sT0}, {sCk}, 7
    s_add_u32 {sSoA}, {sSoA}, {sT0}
    s_lshl_b32 {sT0}, {sJ}, 2
    s_add_u32 {sT0}, {sT0}, {sM}
    s_mul_i32 {sSoB}, {sT0}, 384
    s_lshl_b32 {sT0}, {sCk}, 2
    s_add_u32 {sT0}, {sT0}, {sQ}
    s_mul_i32 {sT0}, {sT0}, {16*3456}
    s_add_u32 {sSoB}, {sSoB}, {sT0}
    s_lshl_b32 {sMA}, {sQ}, 12
    s_lshl_b32 {sMB}, {sQ}, 11
    s_waitcnt lgkmcnt(0)
    """)
    a.srd(r0, pX[0], pX[1], X_BYTES)
    a.srd(r1, pW1[0], pW1[1], W1_BYTES)
    def xdma(base):
        a(f"s_add_u32 m0, {sMA}, {base}\ns_add_u32 {sCk}, {sCk}, 1")
        for i in range(4): a(f"buffer_load_dwordx4 {vOffA[i]}, {r0}, {sSoA} offen offset:{1024*i} lds")
    def adv(w):
        a(f"s_cmp_eq_u32 {sCk}, 10\ns_cselect_b32 {sT0}, -9, 1\ns_lshl_b32 {sT1}, {sT0}, 7\ns_add_u32 {sSoA}, {sSoA}, {sT1}")
        if w: a(f"s_mul_i32 {sT0}, {sT0}, {64*3456}\ns_add_u32 {sSoB}, {sSoB}, {sT0}")
    def g1chunk(c):
        base = (c % 3) * S1
        xdma(base)
        for u in range(3):
            a(f"s_add_u32 m0, {sMB}, {base + 16384 + u*(8192 - 128)}\ns_nop 0")
            for i in range(2): a(f"buffer_load_dwordx4 {vOffB[i]}, {r1}, {sSoB} offen offset:{1024*i + 128*u} lds")
        adv(True)
    def started():
        a(f"s_lshl_b32 {sT0}, s2, 7\ns_cmp_lg_u32 {sW}, 4\ns_cselect_b32 {sT0}, {BIG}, {sT0}")
        flag(sT0)
    a(f"s_cmp_ge_u32 {sM}, 5\ns_cbranch_scc1 S_t1load")
    g1chunk(0); g1chunk(1)
    common_after_kernarg()
    for c in range(8):
        a(f"s_waitcnt vmcnt({11 if c == 2 else 10}){' lgkmcnt(0)' if c else ''}\ns_barrier")
        if c >= 1: ST(c, 4)
        if c == 1: tagready(); started()
        g1chunk(c + 2)
    V.release(mark); S.release(smark)
    vOffW = V(); vPoll = V(); vFl = V(2); vDump = V(2); sSoW, sSoH, sMW, sMH, sSrc, sG1 = [S() for _ in range(6)]
    a(f"s_mov_b32 {sG1}, 1\nS_load2:")
    a.srd(r0, pW2[0], pW2[1], W2_BYTES)
    a.srd_off(r1, pWS, WS_H, H_BYTES)
    a(f"""
    s_mul_i32 {sSoW}, {sJ}, {864*1280}
    v_lshrrev_b32 {vT0}, 3, {vL}
    v_mul_u32_u24 {vT0}, 1280, {vT0}
    v_lshrrev_b32 {vT1}, 4, {vL}
    v_lshlrev_b32 {vT1}, 1, {vT1}
    v_and_b32 {vT2}, 7, {vL}
    v_xor_b32 {vT1}, {vT1}, {vT2}
    v_lshl_add_u32 {vOffW}, {vT1}, 4, {vT0}
    s_lshr_b32 {sT0}, {sQ}, 1
    s_mul_i32 {sT0}, {sT0}, 640
    s_add_u32 {sSoW}, {sSoW}, {sT0}
    s_and_b32 {sT0}, {sQ}, 1
    s_mul_i32 {sT0}, {sT0}, {48*1280}
    s_add_u32 {sSoW}, {sSoW}, {sT0}
    s_lshl_b32 {sT0}, {sM}, 7
    s_add_u32 {sSoW}, {sSoW}, {sT0}
    s_mul_i32 {sMW}, {sQ}, 6144
    s_add_u32 {sMH}, {sMW}, 24576
    s_lshl_b32 {sT0}, {sJ}, 1
    s_xor_b32 {sT0}, {sT0}, {sQ}
    s_lshl_b32 {sT1}, {sRb}, 2
    s_add_u32 {sT0}, {sT0}, {sT1}
    s_mul_i32 {sSoH}, {sT0}, {54*2048}
    s_mul_i32 {sT0}, {sJ}, {27*2048}
    s_add_u32 {sSoH}, {sSoH}, {sT0}
    s_mul_i32 {sT0}, {sRb}, 36
    s_mul_i32 {sT1}, {sJ}, 18
    s_add_u32 {sT0}, {sT0}, {sT1}
    s_add_u32 {sT0}, {sT0}, {FH}
    v_min_u32 {vT0}, 17, {vL}
    v_add_lshl_u32 {vPoll}, {vT0}, {sT0}, 7
    """)
    def issue_w(c, th=None):
        a(f"s_add_u32 m0, {sMW}, {(c % 3)*S2}")
        for i in range(6):
            a(f"s_add_u32 {sSrc}, {sSoW}, {96*1280*c + 8*1280*i - 1024*(i % 4)}\nbuffer_load_dwordx4 {vOffW}, {r0}, {sSrc} offen offset:{1024*(i%4)} lds")
            if i == 3: a("s_add_u32 m0, m0, 4096")
            if th is not None: a(f"s_waitcnt vmcnt({th})")
    def issue_h(c):
        a(f"s_add_u32 m0, {sMH}, {(c % 3)*S2}\ns_add_u32 {sSrc}, {sSoH}, {6144*c}")
        for i in range(6):
            a(f"buffer_load_dwordx4 {vL16}, {r1}, {sSrc} offen offset:{1024*(i%4)} sc1 lds")
            if i == 3: a(f"s_add_u32 m0, m0, 4096\ns_add_u32 {sSrc}, {sSrc}, 4096")
    def g1bar(w, lab):
        a(f"s_cmp_eq_u32 {sG1}, 0\ns_cbranch_scc1 {lab}\n{w}\ns_barrier\n{lab}:")
    a.srd(r2, pX[0], pX[1], X_BYTES)
    a(f"""
    s_lshl_b32 {sT0}, {sRb}, 2
    s_lshl_b32 {sT1}, {sJ}, 1
    s_add_u32 {sT0}, {sT0}, {sT1}
    s_and_b32 {sT1}, {sQ}, 1
    s_add_u32 {sT0}, {sT0}, {sT1}
    s_mul_i32 {sT0}, {sT0}, 1280
    s_lshr_b32 {sT1}, {sQ}, 1
    s_mul_i32 {sT1}, {sT1}, 640
    s_add_u32 {sT0}, {sT0}, {sT1}
    s_lshl_b32 {sT1}, {sM}, 7
    s_add_u32 {sT0}, {sT0}, {sT1}
    v_lshrrev_b32 {vT0}, 3, {vL}
    v_xor_b32 {vT1}, {vT0}, {vT2}
    v_mul_u32_u24 {vT0}, {64*1280}, {vT0}
    v_lshl_add_u32 {vT0}, {vT1}, 4, {vT0}
    s_lshl_b32 {sT1}, {sQ}, 12
    s_add_u32 m0, {sT1}, {XL_OFF}
    """)
    for i in range(4): a(f"s_add_u32 {sT1}, {sT0}, {i*(8*64*1280 - 1024)}\nbuffer_load_dwordx4 {vT0}, {r2}, {sT1} offen offset:{1024*i} lds")
    ST(1)
    g1bar("s_waitcnt vmcnt(14)", "S_b8"); issue_w(1)
    g1bar("s_waitcnt vmcnt(10)", "S_b9"); issue_w(2)
    g1bar("s_nop 0", "S_bs")
    ST(2)
    a(f"""
    s_lshr_b32 {sT0}, s2, 3
    s_lshl_b32 {sT0}, {sT0}, 2
    s_add_u32 {sT0}, {sT0}, {sQ}
    s_lshl_b32 {sT0}, {sT0}, 13
    s_mul_i32 {sT1}, {sJ}, {864*1280}
    s_add_u32 {sT0}, {sT0}, {sT1}
    s_add_u32 {sT0}, {sT0}, {(8640 - 5120)*128}
    v_lshlrev_b32 {vT0}, 7, {vL}
    buffer_load_dword {vPf}, {vT0}, {r0}, {sT0} offen
    """)
    issue_w(0, thr)
    a("s_barrier")
    ST(3)
    a(f"s_cmp_lg_u32 {sQ}, 0\ns_cbranch_scc1 S_hp_ok")
    if hpre: a(f"s_sleep {hpre}")
    poll("S_hp", [vPoll], vFl, nap)
    a("s_waitcnt vmcnt(0)\ns_barrier")
    ST(4)
    for c in range(3): issue_h(c)
    for c in range(9):
        a(f"s_waitcnt vmcnt({ {0: 12, 1: 6, 8: 0}.get(c, 12) })")
        a("s_barrier")
        if 1 <= c <= 7: ST(c, 1)
        if c == 0: ST(5)
        if 1 <= c <= 6: issue_h(c + 2); issue_w(c + 2)
    a(f"""
    s_cmp_lg_u32 {sQ}, 0
    s_cbranch_scc1 S_yp_ok
    s_lshl_b32 {sT0}, {sRb}, 1
    s_add_u32 {sT0}, {sT0}, {sJ}
    s_lshl_b32 {sT0}, {sT0}, 3
    s_add_u32 {sT0}, {sT0}, {sM}
    s_lshl_b32 {sT0}, {sT0}, 2
    s_add_u32 {sT0}, {sT0}, {FY}
    v_min_u32 {vT0}, 3, {vL}
    v_add_lshl_u32 {vPoll}, {vT0}, {sT0}, 7
    """)
    poll("S_yp", [vPoll], vFl, ynap)
    done()
    def wtouch():
        a.srd(r1, pWr[0], pWr[1], W_BYTES)
        a.srd(r2, pWi[0], pWi[1], W_BYTES)
        a(f"""
        s_and_b32 {sT0}, s2, 7
        s_lshl_b32 {sT0}, {sT0}, 1
        s_lshr_b32 {sT1}, {sQ}, 1
        s_add_u32 {sT0}, {sT0}, {sT1}
        s_sub_u32 {sT1}, 32, {sT0}
        s_cmp_eq_u32 {sT0}, 0
        s_cselect_b32 {sT1}, 16, {sT1}
        s_bitcmp1_b32 {sQ}, 0
        s_cselect_b32 {sT0}, {sT1}, {sT0}
        s_lshr_b32 {sT1}, s2, 3
        s_sub_u32 {sT1}, {sT1}, 20
        s_mul_i32 {sT1}, {sT1}, {6*32}
        s_add_u32 {sT0}, {sT0}, {sT1}
        s_mul_i32 {sT0}, {sT0}, 642
        v_and_b32 {vT0}, 7, {vL}
        v_min_u32 {vT0}, 5, {vT0}
        v_lshl_add_u32 {vT0}, {vT0}, 7, {sT0}
        v_lshrrev_b32 {vT1}, 3, {vL}
        v_min_u32 {vT1}, 5, {vT1}
        v_mul_u32_u24 {vT1}, {32*642}, {vT1}
        v_add_u32 {vT0}, {vT0}, {vT1}
        buffer_load_ushort {vPf}, {vT0}, {r1}, 0 offen
        buffer_load_ushort {vPf}, {vT0}, {r2}, 0 offen
        """)
    a("S_t1load:")
    for c in range(3): xdma(16384*c); adv(False)
    common_after_kernarg()
    for c in range(10):
        a(f"s_waitcnt vmcnt({ {2: 9, 3: 9, 7: 10, 8: 6, 9: 2}.get(c, 8) }){' lgkmcnt(0)' if c else ''}\ns_barrier")
        if c == 1: tagready(); started()
        if c < 7: xdma(16384*((c + 3) % 4)); adv(False)
        if c == 6: wtouch()
    a("s_setprio 0\ns_branch S_t2")
    V.release(mark); S.release(smark)
    cw = V(40); ca = V(8); sU = S()
    a(f"""
    S_colsum:
    s_lshl_b32 {sU}, {sJ}, 4
    s_add_u32 {sU}, {sU}, {sRb}
    v_lshrrev_b32 {vT0}, 3, {vL}
    v_mul_u32_u24 {vT0}, 3456, {vT0}
    v_and_b32 {vT1}, 0x70, {vL16}
    v_add_u32 {vT0}, {vT0}, {vT1}
    s_mul_i32 {sT0}, {sW}, {80*3456}
    s_lshl_b32 {sT1}, {sU}, 7
    s_add_u32 {sT0}, {sT0}, {sT1}
    s_waitcnt lgkmcnt(0)
    """)
    common_after_kernarg()
    a.srd(r0, pW1[0], pW1[1], W1_BYTES)
    a.srd(r1, pB1[0], pB1[1], 1728*2)
    a.srd_off(r2, pWS, WS_CS, CS_BYTES)
    a(f"s_cmp_ge_u32 {sU}, 27\ns_cbranch_scc1 S_nocs")
    for i in range(10): a(f"buffer_load_dwordx4 {cw[4*i:4*i+4]}, {vT0}, {r0}, {sT0} offen\ns_add_u32 {sT0}, {sT0}, {8*3456}")
    a(f"v_lshlrev_b32 {vT2}, 1, {vL}\nbuffer_load_ushort {vPf}, {vT2}, {r1}, {sT1} offen")
    for i in range(10):
        a(f"s_waitcnt vmcnt({10 - i})")
        for k in range(4):
            if i == 0: a(f"v_lshlrev_b32 {ca[2*k]}, 16, {cw[k]}\nv_and_b32 {ca[2*k+1]}, 0xffff0000, {cw[k]}")
            else: a(f"v_lshlrev_b32 {vT0}, 16, {cw[4*i+k]}\nv_and_b32 {vT1}, 0xffff0000, {cw[4*i+k]}\nv_add_f32 {ca[2*k]}, {ca[2*k]}, {vT0}\nv_add_f32 {ca[2*k+1]}, {ca[2*k+1]}, {vT1}")
    a(f"""
    s_lshl_b32 {sT0}, {sW}, 11
    v_lshl_add_u32 {vT0}, {vL}, 5, {sT0}
    ds_write_b128 {vT0}, {ca[0:4]}
    ds_write_b128 {vT0}, {ca[4:8]} offset:16
    s_waitcnt lgkmcnt(0)
    s_barrier
    s_cmp_lg_u32 {sW}, 0
    s_cbranch_scc1 S_csb
    v_lshlrev_b32 {vT0}, 2, {vL}
    """)
    for b in range(4):
        for i in range(8): a(f"ds_read2st64_b32 {cw[2*i:2*i+2]}, {vT0} offset0:{16*b + 2*i} offset1:{16*b + 2*i + 1}")
        a("s_waitcnt lgkmcnt(0)")
        for i in range(16): a(f"v_add_f32 {ca[i%2]}, {cw[i]}, {ca[i%2]}" if b or i > 1 else f"v_mov_b32 {ca[i]}, {cw[i]}")
    a(f"""
    v_add_f32 {ca[0]}, {ca[0]}, {ca[1]}
    v_cvt_pk_bf16_f32 {vT0}, -{ca[0]}, -{ca[0]}
    v_and_b32 {vT1}, 0xffff0000, {vT0}
    v_sub_f32 {vT1}, -{ca[0]}, {vT1}
    v_cvt_pk_bf16_f32 {ca[4]}, -{ca[0]}, {vT1}
    v_mov_b32 {ca[6]}, 0
    s_add_u32 {sT1}, {sTag}, {TAG_STEP}
    v_mov_b32 {ca[7]}, {sT1}
    s_lshl_b32 {sT0}, {sU}, 10
    s_waitcnt vmcnt(0)
    v_mov_b32 {ca[5]}, {vPf}
    buffer_store_dwordx4 {ca[4:8]}, {vL16}, {r2}, {sT0} offen sc1
    S_csb:
    S_nocs:
    s_waitcnt vmcnt(0) lgkmcnt(0)
    s_barrier
    """)
    tagready(); started()
    a(f"s_lshr_b32 {sT0}, {sW}, 2\ns_and_b32 {sT0}, {sT0}, {sJ}\ns_cbranch_scc0 S_nows")
    wtouch()
    a("S_nows:")
    ST(1)
    a.srd(r0, pW2[0], pW2[1], W2_BYTES)
    a(f"""
    s_and_b32 {sT0}, {sRb}, 3
    s_lshl_b32 {sT0}, {sT0}, 3
    s_add_u32 {sT0}, {sT0}, {sW}
    s_mul_i32 {sT0}, {sT0}, {55*128}
    s_mul_i32 {sT1}, {sJ}, {864*1280}
    s_add_u32 {sT0}, {sT0}, {sT1}
    v_min_u32 {vT0}, 54, {vL}
    v_lshlrev_b32 {vT0}, 7, {vT0}
    """)
    for i in range(ntouch):
        if i == nt1: a(f"s_cmp_eq_u32 {sJ}, 1\ns_cbranch_scc1 S_tend")
        a(f"buffer_load_dword {vPf}, {vT0}, {r0}, {sT0} offen\ns_add_u32 {sT0}, {sT0}, {32*55*128}")
    a("S_tend:")
    if stamp and fine == 0: a("s_waitcnt vmcnt(0)"); ST(2)
    a(f"""
    s_mov_b32 {sCk}, {BIG}
    s_cmp_eq_u32 {sJ}, 1
    s_cbranch_scc1 S_t2
    s_mov_b32 {sG1}, 0
    s_cmp_ge_u32 {sW}, 4
    s_cbranch_scc1 S_load2
    s_branch S_comp2
    """)
    V.release(mark); S.release(smark)
    vR16 = V(); vG = V(); vXa = V(2); vWa = V(6); sRp, sHf, sSo, sFl = S(), S(), S(), S()
    acc = [[V(4) for t in range(6)] for r in range(4)]
    bX = [V(16), V(16)]; bW = [V(24), V(24)]
    st = V(8); cs = V(24); augX = V(4); kk = V(12); vSo = V()
    a(f"""
    S_comp1:
    s_cmp_ge_u32 {sM}, 5
    s_cbranch_scc1 S_t1
    s_and_b32 {sRp}, {sW}, 1
    s_lshr_b32 {sHf}, {sW}, 1
    v_and_b32 {vR16}, 15, {vL}
    v_lshrrev_b32 {vG}, 4, {vL}
    v_lshrrev_b32 {vT0}, 1, {vR16}
    v_xor_b32 {vT0}, {vT0}, {vG}
    v_lshlrev_b32 {vT0}, 4, {vT0}
    v_lshl_add_u32 {vT0}, {vR16}, 7, {vT0}
    s_lshl_b32 {sT0}, {sRp}, 13
    v_add_u32 {vXa[0]}, {sT0}, {vT0}
    v_xor_b32 {vXa[1]}, 64, {vXa[0]}
    v_lshrrev_b32 {vT0}, 2, {vR16}
    v_lshl_add_u32 {vT0}, {vG}, 3, {vT0}
    v_lshlrev_b32 {vT0}, 7, {vT0}
    v_and_b32 {vT1}, 3, {vL}
    v_lshl_add_u32 {vT0}, {vT1}, 3, {vT0}
    v_bfe_u32 {vT1}, {vL}, 3, 2
    v_lshl_add_u32 {vT0}, {vT1}, 5, {vT0}
    s_mul_i32 {sT1}, {sHf}, 6
    """)
    for t in range(6):
        a(f"""
        s_add_u32 {sT0}, {sT1}, {t}
        s_lshr_b32 {sT2}, {sT0}, 2
        s_lshl_b32 {sT2}, {sT2}, 13
        s_and_b32 {sT0}, {sT0}, 3
        s_lshl_b32 {sT0}, {sT0}, 5
        s_add_u32 {sT0}, {sT0}, {sT2}
        s_add_u32 {sT0}, {sT0}, 16384
        v_xor_b32 {vWa[t]}, {sT0}, {vT0}
        """)
    a(f"""
    s_lshl_b32 {sT0}, {sJ}, 2
    s_add_u32 {sT0}, {sT0}, {sM}
    s_lshl_b32 {sT0}, {sT0}, 1
    s_add_u32 {sT0}, {sT0}, {sHf}
    s_lshl_b32 {sFl}, {sT0}, 1
    s_add_u32 {sFl}, {sFl}, {sRp}
    s_mul_i32 {sT1}, {sRb}, 36
    s_add_u32 {sFl}, {sFl}, {sT1}
    s_add_u32 {sFl}, {sFl}, {FH}
    s_lshl_b32 {sFl}, {sFl}, 7
    s_mul_i32 {sT2}, {sT0}, {96*16}
    v_lshl_add_u32 {vSo}, {vR16}, 4, {sT2}
    s_lshl_b32 {sT1}, {sRb}, 1
    s_add_u32 {sT1}, {sT1}, {sRp}
    s_mul_i32 {sSo}, {sT1}, 108
    s_mul_i32 {sT0}, {sT0}, 3
    s_add_u32 {sSo}, {sSo}, {sT0}
    s_lshl_b32 {sSo}, {sSo}, 11
    s_lshl_b32 {sT1}, {sT1}, 9
    s_lshl_b32 {sT0}, {sJ}, 14
    s_add_u32 {sT1}, {sT1}, {sT0}
    v_lshl_add_u32 {vT2}, {vR16}, 3, {sT1}
    v_mov_b32 {augX[2]}, 0
    v_mov_b32 {augX[3]}, 0
    s_waitcnt lgkmcnt(0)
    """)
    common_after_kernarg()
    a.srd_off(r0, pWS, WS_H, H_BYTES)
    a.srd_off(r1, pWS, WS_ST, ST_BYTES)
    a.srd_off(r2, pWS, WS_CS, CS_BYTES)
    def sload(): return [f"buffer_load_dwordx2 {st[2*r:2*r+2]}, {vT2}, {r1}, 0 offen offset:{128*r} sc1" for r in range(4)] + \
                        [f"buffer_load_dwordx4 {cs[4*t:4*t+4]}, {vSo}, {r2}, 0 offen offset:{256*t} sc1" for t in range(6)]
    def rd1(b, u): return [f"ds_read_b128 {bX[b][4*r:4*r+4]}, {vXa[u]} offset:{2048*r}" for r in range(4)] + \
                          [f"ds_read_b64_tr_b16 {bW[b][4*t+2*e:4*t+2*e+2]}, {vWa[t]} offset:{4096*u + 512*e}" for t in range(6) for e in range(2)]
    def mm1(b, z=False): return [f"{MF16} {acc[r][t]}, {bW[b][4*t:4*t+4]}, {bX[b][4*r:4*r+4]}, {0 if z else acc[r][t]}" for t in range(6) for r in range(4)]
    ST(1)
    for n in range(20):
        c, u = divmod(n, 2)
        a(".p2align 3\ns_waitcnt lgkmcnt(0)\n" + ("s_barrier" if u == 0 else "s_nop 0"))
        if n == 0: ST(2)
        if dsl[0] and u == 0 and dsl[1] <= c < dsl[2]: a(f"s_sleep {dsl[0]}\ns_nop 0")
        up = [f"v_add_u32 {v}, {(S1 if c % 3 < 2 else -2*S1) & 0xffffffff}, {v}" for v in [vXa[0], vXa[1]] + [vWa[t] for t in range(6)]] if u == 1 else []
        ex = sload() if n == 18 else []
        for l in (weave(mm1(1 - u, n == 1), (rd1(u, u), [1]*16 + [0]*8), (up, [0]*16 + [1]*8), (ex, [0]*14 + [1]*10)) if n else rd1(0, 0)): a(l)
    a("s_waitcnt lgkmcnt(0)\ns_barrier")
    ST(3)
    for l in mm1(1): a(l)
    tagready()
    c0 = -2 * math.sqrt(2 / math.pi) * math.log2(math.e); c1 = c0 * 0.044715
    a(f"s_mov_b32 {sC}, 0\nS_schk:\ns_waitcnt vmcnt(0)\nv_xor_b32 {vT0}, {vTag}, {st[1]}")
    for tg in [st[3], st[5], st[7]] + [cs[4*t+3] for t in range(6)]: a(f"v_xor_b32 {vT1}, {vTag}, {tg}\nv_or_b32 {vT0}, {vT0}, {vT1}")
    a(f"v_cmp_ne_u32 vcc, 0, {vT0}\ns_add_u32 {sC}, {sC}, 1\ns_cbranch_vccz S_sok\ns_cmp_ge_u32 {sC}, {SPIN_MAX}\ns_cbranch_scc1 S_sok\ns_sleep 2")
    for l in sload(): a(l)
    a(f"s_branch S_schk\nS_sok:\nv_cmp_eq_u32 vcc, 0, {vG}\ns_mov_b32 {sT0}, 0x01000100")
    for t in range(6): a(f"v_mov_b32 {cs[4*t+3]}, 0")
    for r in range(4):
        a(f"""
        v_perm_b32 {vT0}, {st[2*r]}, {st[2*r]}, {sT0}
        v_lshrrev_b32 {vT1}, 16, {st[2*r]}
        v_cndmask_b32 {augX[0]}, 0, {vT0}, vcc
        v_cndmask_b32 {augX[1]}, 0, {vT1}, vcc
        v_and_b32 {st[2*r]}, 0xffff0000, {st[2*r]}
        v_rcp_f32 {vT0}, {st[2*r]}
        """)
        fl = [f"v_mul_f32 {kk[2*r]}, {fhex(c0)}, {vT0}", f"v_mul_f32 {vT1}, {vT0}, {vT0}", f"v_mul_f32 {vT1}, {vT1}, {vT0}", f"v_mul_f32 {kk[2*r+1]}, {fhex(c1)}, {vT1}"]
        for l in weave([f"{MF16} {acc[r][t]}, {cs[4*t:4*t+4]}, {augX}, {acc[r][t]}" for t in range(6)], (fl, [1, 1, 1, 1, 0, 0])): a(l)
    ST(4)
    gq = [bW[0][2*i:2*i+2] for i in range(12)]; far = []
    if local: a(f"s_lshr_b32 {sT0}, {sFl}, 8\ns_mul_i32 {sT1}, {sRb}, 18\ns_sub_u32 {sT0}, {sT0}, {sT1}\ns_cmp_eq_u32 {sT0}, {FH//2 + 8}")
    a(".p2align 3")
    for r in range(4):
        P = [acc[r][i//2][2*(i%2):2*(i%2)+2] for i in range(12)]
        for i in range(12): a(f"v_pk_mul_f32 {gq[i]}, {P[i]}, {P[i]}")
        for i in range(12): a(f"v_pk_fma_f32 {gq[i]}, {gq[i]}, {kk[2*r:2*r+2]}, {kk[2*r:2*r+2]} op_sel:[0,1,0] op_sel_hi:[1,1,0]")
        for i in range(12): a(f"v_pk_mul_f32 {gq[i]}, {gq[i]}, {P[i]}")
        for i in range(12): a(f"v_exp_f32 {gq[i][0]}, {gq[i][0]}\nv_exp_f32 {gq[i][1]}, {gq[i][1]}")
        for i in range(12): a(f"v_pk_fma_f32 {gq[i]}, {gq[i]}, {st[2*r:2*r+2]}, {st[2*r:2*r+2]} op_sel_hi:[1,0,0]")
        for i in range(12): a(f"v_rcp_f32 {gq[i][0]}, {gq[i][0]}\nv_rcp_f32 {gq[i][1]}, {gq[i][1]}")
        for i in range(12): a(f"v_pk_mul_f32 {gq[i]}, {gq[i]}, {P[i]}")
        for i in range(12): a(f"v_cvt_pk_bf16_f32 {acc[r][i//4][i%4]}, {gq[i][0]}, {gq[i][1]}")
        a(f"v_add_u32 {vT0}, {(r//2)*54*2048 + (r%2)*1024 + 0x1000}, {vL16}")
        a(f"v_add_u32 {vT1}, {(r//2)*54*2048 + (r%2)*1024 + 0x100}, {vL16}\nv_subrev_u32 {vT1}, 0x100, {vT1}")
        sts = [f"buffer_store_dwordx4 {acc[r][p]}, {vT0 if p == 2 else vT1}, {r0}, {sSo} offen offset:{2048*(p%2)}" for p in range(3)]
        if local:
            a(f"s_cbranch_scc1 S_far{r}\ns_nop 0\n" + "\n".join(sts) + f"\nS_back{r}:")
            far.append(f"S_far{r}:\n" + "\n".join(x + " sc1" for x in sts) + f"\ns_branch S_back{r}")
        else: a("\n".join(x + " sc1" for x in sts))
    ST(5)
    a("s_waitcnt vmcnt(0)")
    if local:
        a("s_cbranch_scc1 S_farf"); flag(sFl, ""); a("s_branch S_comp2\nS_farf:")
    flag(sFl)
    V.release(mark); S.release(smark)
    vR16 = V(); vG = V(); vHa = V(); vWa = V(4); vOo = V(); vL8 = V(); sNu, sSg, sZo, sZi, sYo, sOo = [S() for _ in range(6)]
    KEEP = V(32); SEND = V(32); bH = [V(16), V(16)]; bW = [V(16), V(16)]; ZS = V(22); ZR = V(22); YR = V(24); U = V(8); vXl = V(); vXr = V()
    a("S_comp2:")
    ST(6)
    a(f"""
    s_barrier
    s_and_b32 {sNu}, {sW}, 1
    s_lshr_b32 {sSg}, {sW}, 1
    v_and_b32 {vR16}, 15, {vL}
    v_lshrrev_b32 {vG}, 4, {vL}
    v_lshlrev_b32 {vL8}, 3, {vL}
    s_mul_i32 {sT0}, {sNu}, 6144
    s_add_u32 {sT0}, {sT0}, 24576
    v_add_u32 {vHa}, {sT0}, {vL16}
    v_lshrrev_b32 {vT0}, 2, {vL}                ; row 4g + r16/4
    v_lshlrev_b32 {vT0}, 7, {vT0}
    v_and_b32 {vT1}, 3, {vL}
    v_lshl_add_u32 {vT0}, {vT1}, 3, {vT0}
    v_bfe_u32 {vT1}, {vL}, 3, 2
    v_lshl_add_u32 {vT0}, {vT1}, 5, {vT0}
    s_mul_i32 {sT0}, {sSg}, 12288
    v_add_u32 {vWa[0]}, {sT0}, {vT0}
    v_xor_b32 {vWa[1]}, 32, {vWa[0]}
    v_xor_b32 {vWa[2]}, 64, {vWa[0]}
    v_xor_b32 {vWa[3]}, 96, {vWa[0]}
    s_lshl_b32 {sZo}, s2, 2
    s_add_u32 {sZo}, {sZo}, {sW}
    s_xor_b32 {sZi}, {sZo}, 4
    s_mul_i32 {sZo}, {sZo}, {ZW}
    s_mul_i32 {sZi}, {sZi}, {ZW}
    s_lshl_b32 {sT0}, {sRb}, 2
    s_lshl_b32 {sT1}, {sJ}, 1
    s_add_u32 {sT0}, {sT0}, {sT1}
    s_add_u32 {sT0}, {sT0}, {sNu}
    s_mul_i32 {sYo}, {sT0}, 5
    s_add_u32 {sYo}, {sYo}, {sM}
    s_lshl_b32 {sYo}, {sYo}, 1
    s_add_u32 {sYo}, {sYo}, {sSg}
    s_mul_i32 {sYo}, {sYo}, {4*1536}
    s_mul_i32 {sOo}, {sT0}, 1280
    s_lshl_b32 {sT0}, {sM}, 7
    s_add_u32 {sOo}, {sOo}, {sT0}
    s_mul_i32 {sT0}, {sSg}, 640
    s_add_u32 {sOo}, {sOo}, {sT0}
    v_lshrrev_b32 {vT0}, 3, {vL}
    v_and_b32 {vT1}, 7, {vL}
    v_xor_b32 {vT1}, {vT1}, {vT0}
    v_mul_u32_u24 {vT0}, {64*1280}, {vT0}
    v_lshl_add_u32 {vOo}, {vT1}, 4, {vT0}
    """)
    a.srd(r0, pB2[0], pB2[1], 1280)
    a(f"""
    s_lshl_b32 {sT1}, {sM}, 7
    s_add_u32 {sT0}, {sT0}, {sT1}
    v_lshlrev_b32 {vT0}, 3, {vG}
    """)
    for t in range(4): a(f"buffer_load_dwordx2 {YR[2*t:2*t+2]}, {vT0}, {r0}, {sT0} offen offset:{32*t}")
    a(f"""
    v_lshrrev_b32 {vT0}, 1, {vG}
    v_and_b32 {vT1}, 7, {vL}
    v_xor_b32 {vT0}, {vT0}, {vT1}
    v_lshlrev_b32 {vT0}, 4, {vT0}
    v_lshl_add_u32 {vT0}, {vR16}, 7, {vT0}
    v_and_b32 {vT1}, 1, {vG}
    v_lshl_add_u32 {vT0}, {vT1}, 3, {vT0}
    s_lshl_b32 {sT0}, {sW}, 12
    s_add_u32 {sT0}, {sT0}, {XL_OFF}
    v_add_u32 {vT0}, {sT0}, {vT0}
    v_mov_b32 {vXl}, {vT0}
    v_add_u32 {vXr}, {sT0}, {vL16}
    """)
    for t in range(4):
        if t: a(f"v_xor_b32 {vT1}, {32*t}, {vT0}")
        for r in range(2): a(f"ds_read_b64 {ZR[4*t+2*r:4*t+2*r+2]}, {vT1 if t else vT0} offset:{2048*r}")
    a.srd_off(r0, pWS, WS_Z, Z_BYTES)
    a.srd_off(r1, pWS, WS_Y, Y_BYTES)
    a.srd(r2, pOut[0], pOut[1], X_BYTES)
    for i in (3, 7, 11, 15, 19, 21): a(f"v_mov_b32 {ZS[i]}, {sTag}")
    a("s_waitcnt vmcnt(0) lgkmcnt(0)")
    for t in range(4):
        for k in range(2): a(f"v_lshlrev_b32 {U[2*k]}, 16, {YR[2*t+k]}\nv_and_b32 {U[2*k+1]}, 0xffff0000, {YR[2*t+k]}")
        for r in range(2):
            D = KEEP[16*r+4*t:16*r+4*t+4]
            for k in range(2): a(f"v_lshlrev_b32 {D[2*k]}, 16, {ZR[4*t+2*r+k]}\nv_and_b32 {D[2*k+1]}, 0xffff0000, {ZR[4*t+2*r+k]}")
            for k in range(2): a(f"v_pk_add_f32 {D[2*k:2*k+2]}, {D[2*k:2*k+2]}, {U[2*k:2*k+2]}")
    a("s_barrier")
    A2 = lambda r, t: (SEND if r >= 2 else KEEP)[16*(r%2)+4*t:16*(r%2)+4*t+4]
    def rd2(b, ks): return [f"ds_read_b128 {bH[b][4*r:4*r+4]}, {vHa} offset:{12288*(r//2) + 2048*ks + 1024*(r%2)}" for r in range(4)] + \
                           [f"ds_read_b64_tr_b16 {bW[b][4*t+2*e:4*t+2*e+2]}, {vWa[t]} offset:{4096*ks + 2048*e}" for t in range(4) for e in range(2)]
    def mm2(b, z=False, rs=(0, 1, 2, 3)): return [f"{MF16} {A2(r, t)}, {bW[b][4*t:4*t+4]}, {bH[b][4*r:4*r+4]}, {0 if z and r >= 2 else A2(r, t)}" for t in range(4) for r in rs]
    for n in range(27):
        c, ks = divmod(n, 3)
        a(".p2align 3\ns_waitcnt lgkmcnt(0)\n" + ("s_barrier" if ks == 0 else "s_nop 0"))
        if n == 0: ST(7)
        up = [f"v_add_u32 {v}, {(S2 if c % 3 < 2 else -2*S2) & 0xffffffff}, {v}" for v in [vHa] + [vWa[t] for t in range(4)]] if ks == 2 else []
        for l in (weave(mm2((n-1) % 2, n == 1), (rd2(n % 2, ks), [1]*12 + [0]*4), (up, [0]*12 + [2, 1, 1, 1])) if n else rd2(0, 0)): a(l)
    a("s_waitcnt lgkmcnt(0)")
    cv = [f"v_cvt_pk_bf16_f32 {ZS[i + i//3]}, {SEND[2*i]}, {SEND[2*i+1]}" for i in (0, 1, 8, 9, 2, 3, 10, 11, 4, 5, 12, 13, 6, 7, 14, 15)]
    for l in mm2(0, rs=(2, 3)) + weave(mm2(0, rs=(0, 1)), (cv, [0, 0, 1, 1, 2, 2, 2, 2])): a(l)
    ST(1, 2)
    def zio(op, R, so):
        for i in range(4): a(f"buffer_{op}_dwordx4 {R[4*i:4*i+4]}, {vL16}, {r0}, {so} offen offset:{1024*i} sc1")
        a(f"s_add_u32 {sT0}, {so}, 4096\nbuffer_{op}_dwordx4 {R[16:20]}, {vL16}, {r0}, {sT0} offen sc1\nbuffer_{op}_dwordx2 {R[20:22]}, {vL8}, {r0}, {sT0} offen offset:1024 sc1")
    zio("store", ZS, sZo)
    def addbf(src, dst):
        return [f"v_lshlrev_b32 {U[0]}, 16, {src[0]}", f"v_and_b32 {U[1]}, 0xffff0000, {src[0]}", f"v_lshlrev_b32 {U[2]}, 16, {src[1]}", f"v_and_b32 {U[3]}, 0xffff0000, {src[1]}",
                f"v_pk_add_f32 {dst[0:2]}, {dst[0:2]}, {U[0:2]}", f"v_pk_add_f32 {dst[2:4]}, {dst[2:4]}, {U[2:4]}"]
    def yload():
        for t in range(4):
            if t == 2: a(f"s_add_u32 {sT1}, {sYo}, 3072")
            so = sYo if t < 2 else sT1
            a(f"buffer_load_dwordx4 {YR[6*t:6*t+4]}, {vL16}, {r1}, {so} offen offset:{1536*(t%2)} sc1\nbuffer_load_dwordx2 {YR[6*t+4:6*t+6]}, {vL8}, {r1}, {so} offen offset:{1536*(t%2) + 1024} sc1")
    def tagchk(regs, lab, cnt):
        a(f"s_add_u32 {sC}, {sC}, 1\ns_waitcnt vmcnt({cnt})\nv_xor_b32 {vT0}, {vTag}, {regs[0]}")
        for i in range(1, len(regs) - 1, 2): a(f"v_xor_b32 {vT1}, {vTag}, {regs[i]}\nv_xor_b32 {vT2}, {vTag}, {regs[i+1]}\nv_or3_b32 {vT0}, {vT0}, {vT1}, {vT2}")
        a(f"v_xor_b32 {vT1}, {vTag}, {regs[-1]}\nv_or_b32 {vT0}, {vT0}, {vT1}\nv_cmp_ne_u32 vcc, 0, {vT0}\ns_cmp_ge_u32 {sC}, {SPIN_MAX}\ns_cbranch_scc1 {lab}_ok\ns_cbranch_vccz {lab}_ok")
    yt = [YR[6*t+k] for t in range(4) for k in (3, 5)]; zt = [ZR[i] for i in (3, 7, 11, 15, 19, 21)]
    a(f"s_mov_b32 {sC}, 0\ns_waitcnt vmcnt({zw})")
    zio("load", ZR, sZi)
    a("s_barrier")
    yload()
    tagchk(zt, "S_z", 8)
    a("S_z:\ns_sleep 6"); zio("load", ZR, sZi); tagchk(zt, "S_z", 0); a("s_branch S_z\nS_z_ok:")
    ST(2, 2)
    for r in range(2):
        for t in range(4):
            i = 8*r + 2*t
            for l in addbf([ZR[i + i//3], ZR[i + 1 + (i+1)//3]], A2(r, t)): a(l)
    tagchk(yt, "S_y", 0)
    a(f"S_y:\ns_sleep 6"); yload(); tagchk(yt, "S_y", 0); a("s_branch S_y\nS_y_ok:")
    ST(3, 2)
    for t in range(4):
        if t: a(f"v_xor_b32 {vT1}, {32*t}, {vXl}")
        for r in range(2):
            D = A2(r, t)
            for l in addbf([YR[6*t+2*r], YR[6*t+2*r+1+r]], D): a(l)
            a(f"v_cvt_pk_bf16_f32 {D[0]}, {D[0]}, {D[1]}\nv_cvt_pk_bf16_f32 {D[1]}, {D[2]}, {D[3]}\nds_write_b64 {vT1 if t else vXl}, {D[0:2]} offset:{2048*r}")
    for i in range(4): a(f"ds_read_b128 {ZS[4*i:4*i+4]}, {vXr} offset:{1024*i}")
    for i in range(4): a(f"s_waitcnt lgkmcnt({3-i})\nbuffer_store_dwordx4 {ZS[4*i:4*i+4]}, {vOo}, {r2}, {sOo} offen {osc}\ns_add_u32 {sOo}, {sOo}, {8*64*1280}")
    ST(4, 2)
    done()
    for l in far: a(l)
    import sp_fft
    sp_fft.emit(locals())
    return a.text()

def gen_all(stamp=False, head="", **kw):
    n = NAME + "_kernel"
    s = module([(n, gen(stamp, **kw), 256, None)], [(n, 256, 512, LDS)], extra_text="code_end:\n", head=head)
    return s.replace(f"; @launch kernel={n} ", "; @launch ")
if __name__ == "__main__":
    import sys
    open("split.s", "w").write(gen_all())
    if len(sys.argv) > 1:
        head = open("cdna_kernels/" + NAME + ".s.ref").read().split("; Override launch")[0]
        open("cdna_kernels/" + NAME + ".s", "w").write(gen_all(head=head))
```

```python
from asmlib import *
from k1 import weave, row_stats_finish, MF32, MF16, MF4
import sp as C
def emit(L):
    globals().update({k: v for k, v in L.items() if k not in ("C",)})
    F_OFF = 65536; RS_OFF = F_OFF + 40960
    NEG0 = "neg_lo:[1,0,0] neg_hi:[1,0,0]"; NEG1 = "neg_lo:[0,1] neg_hi:[0,1]"; NEG2 = C.NEG2
    V.release(mark); S.release(smark)
    vN1 = V(); vH = V(); vXs = V(4); vFs = V(); vSg = V(); vMu = V(2); vRot = V(2); vS1 = V(4); vU = V(4); vSel = V(4); vBit = V(2)
    vO = V(3); vStep = V(); vBase = V()
    sUnit, sN2, sSelE, sSelO = S(), S(), S(), S(); sMk2 = S(2)
    acc = [V(16) for k in range(4)]; bX = [V(8), V(8)]; bF = [V(16), V(16)]; pm = V(8); Rv = V(16); tt = V(16); B = V(32)
    vFw, vStepS, vPhS, vBs = tt[0], tt[1], tt[2], tt[3]; vKc = tt[4:6]; fs = [acc[0], acc[1]]; fo = acc[2]
    a(f"""
    S_t1:
    v_and_b32 {vN1}, 31, {vL}
    v_lshrrev_b32 {vH}, 5, {vL}
    s_mul_i32 {sUnit}, {sJ}, 3
    s_add_u32 {sUnit}, {sUnit}, {sM}
    s_sub_u32 {sUnit}, {sUnit}, 5
    s_lshl_b32 {sT0}, {sUnit}, 5
    v_add_u32 {vO[0]}, {sT0}, {vN1}               ; k
    v_cmp_eq_u32 {sMask}, 0, {vO[0]}
    v_cvt_f32_u32 {vStep}, {vO[0]}
    v_mul_f32 {vStep}, {fhex(1/640)}, {vStep}
    v_mov_b32 {vT1}, {fhex(0.25)}
    v_cndmask_b32 {vStepS}, {vStep}, {vT1}, {sMask}
    s_and_b32 {sT1}, {sW}, 1
    s_cmp_eq_u32 {sT1}, 0
    s_cselect_b32 {sT2}, {fhex(0.25)}, 0
    v_mov_b32 {vT1}, {sT2}
    v_cndmask_b32 {vPhS}, 0, {vT1}, {sMask}
    s_lshr_b32 {sT2}, {sW}, 1
    s_lshl_b32 {sT2}, {sT2}, 5
    s_add_u32 {sT2}, {sT2}, {sT1}
    s_cmp_ge_u32 {sCk}, 5
    s_cselect_b32 {sT1}, -5, 5
    s_add_u32 {sT1}, {sT1}, {sCk}
    s_lshl_b32 {sT1}, {sT1}, 6
    s_add_u32 {sT2}, {sT2}, {sT1}
    v_lshl_add_u32 {vT0}, {vH}, 3, {sT2}
    v_add_u32 {vFs}, {F_OFF}, {vL16}
    s_lshl_b32 {sT0}, {sW}, 11
    v_add_u32 {vFw}, {sT0}, {vFs}
    v_cvt_f32_u32 {vT0}, {vT0}
    v_mul_f32 {vBase}, {vT0}, {vStep}
    v_fma_f32 {vBs}, {vT0}, {vStepS}, {vPhS}
    v_mul_f32 {vT0}, {fhex(64.0)}, {vStep}
    v_cos_f32 {vT0}, {vT0}
    s_nop 0
    v_add_f32 {vKc[0]}, {vT0}, {vT0}
    v_add_f32 {vKc[1]}, {vT0}, {vT0}
    """)
    offs = [0, 2, 4, 6, 16, 18, 20, 22]
    for c in range(5):
        f = fs[c % 2]; o8 = fo[8*(c%2):8*(c%2)+8]
        if c < 2:
            for j, o in enumerate(offs):
                if o + c: a(f"v_fmamk_f32 {f[j]}, {vStep}, {fhex(o + 64*c)}, {vBase}\nv_fmamk_f32 {f[8+j]}, {vStepS}, {fhex(o + 64*c)}, {vBs}")
            for j, o in enumerate(offs): a(f"v_cos_f32 {f[j]}, {f[j] if o + c else vBase}\nv_sin_f32 {f[8+j]}, {f[8+j] if o + c else vBs}")
        else:
            for j in range(0, 16, 2): a(f"v_pk_fma_f32 {f[j:j+2]}, {fs[1-c%2][j:j+2]}, {vKc}, {f[j:j+2]} {NEG2}")
        for j in range(8): a(f"v_cvt_pk_bf16_f32 {o8[j]}, {f[2*j]}, {f[2*j+1]}")
        a(f"ds_write_b128 {vFw}, {o8[0:4]} offset:{8192*c}\nds_write_b128 {vFw}, {o8[4:8]} offset:{8192*c + 1024}")
    a("s_waitcnt lgkmcnt(0)")
    common_after_kernarg()
    a.srd_off(r0, pWS, C.WS_V, C.V_BYTES)
    a.srd_off(r1, pWS, C.WS_ST, C.ST_BYTES)
    a(f"""
    s_mov_b32 {sSelE}, 0x05040100
    s_mov_b32 {sSelO}, 0x07060302
    s_lshl_b32 {sN2}, {sRb}, 2
    s_add_u32 {sN2}, {sN2}, {sW}
    v_lshrrev_b32 {vT0}, 1, {vN1}
    v_and_b32 {vT1}, 7, {vT0}
    v_xor_b32 {vT1}, {vT1}, {vH}
    v_lshlrev_b32 {vT1}, 4, {vT1}
    v_lshl_add_u32 {vT1}, {vN1}, 7, {vT1}
    s_lshl_b32 {sT0}, {sW}, 12
    v_add_u32 {vXs[0]}, {sT0}, {vT1}
    v_xor_b32 {vXs[1]}, 32, {vXs[0]}
    v_xor_b32 {vXs[2]}, 64, {vXs[0]}
    v_xor_b32 {vXs[3]}, 96, {vXs[0]}
    v_lshlrev_b32 {vSg}, 31, {vL}
    v_cndmask_b32 {vMu[0]}, 1.0, 0, {sMask}
    v_cndmask_b32 {vMu[1]}, 1.0, 0, {sMask}
    v_cvt_f32_u32 {vT0}, {vT0}
    """)
    a(f"""
    v_mul_f32 {vStep}, {fhex(1/32)}, {vT0}
    v_cvt_f32_u32 {vT2}, {sN2}
    v_mul_f32 {vBase}, {vT2}, {vT0}
    v_mul_f32 {vBase}, {fhex(1/2048)}, {vBase}
    v_and_b32 {vT1}, 1, {vN1}
    v_cvt_f32_u32 {vT1}, {vT1}
    v_fmac_f32 {vBase}, {fhex(-0.25)}, {vT1}
    v_cmp_eq_u32 vcc, 1, {vN1}
    v_cvt_f32_u32 {vT1}, {vH}
    v_mul_f32 {vT1}, 4.0, {vT1}
    v_cndmask_b32 {vStep}, {vStep}, 0.5, vcc
    v_cndmask_b32 {vBase}, {vBase}, 0, vcc
    v_fmac_f32 {vBase}, {vT1}, {vStep}
    v_cmp_gt_u32 vcc, 8, {vN1}
    v_sub_u32 {vT1}, 351, {vO[0]}
    v_mul_u32_u24 {vT0}, {64*C.V_ROW}, {vH}
    v_lshl_add_u32 {vO[1]}, {vT1}, 4, {vT0}
    v_lshl_add_u32 {vO[0]}, {vO[0]}, 4, {vT0}
    v_add_u32 {vT1}, {160*16}, {vO[0]}
    v_mov_b32 {vT0}, {C.BIG}
    v_cndmask_b32 {vO[2]}, {vT0}, {vT1}, vcc
    v_cmp_eq_u32 vcc, 0, {vH}
    v_mul_f32 {vT2}, {fhex(1/128)}, {vT2}
    s_nop 0
    v_cndmask_b32 {vT2}, 0, {vT2}, vcc
    v_cos_f32 {vRot[0]}, {vT2}
    v_sin_f32 {vRot[1]}, {vT2}
    """)
    for i in range(1, 16): a(f"v_fmamk_f32 {Rv[i]}, {vStep}, {fhex((i % 4) + 8*(i // 4))}, {vBase}")
    for i in range(16): a(f"v_cos_f32 {Rv[i]}, {Rv[i] if i else vBase}")
    ST(1)
    def half(b, reads, first=False):
        x = bX[b]
        pr = [f"v_perm_b32 {pm[4*par+i]}, {x[2*i+1]}, {x[2*i]}, {sSelO if par else sSelE}" for par in range(2) for i in range(4)]
        mm = [f"{MF32} {acc[k]}, {pm[4*(k//2):4*(k//2)+4]}, {bF[b][4*k:4*k+4]}, {0 if first else acc[k]}" for k in range(4)]
        for l in pr[:6] + weave(mm, (pr[6:], [2, 0, 0, 0]), (reads or ["s_nop 0"], [3, 3, 0, 0])): a(l)
    sld = f"buffer_load_dwordx2 {vU[0:2]}, {vS1[0]}, {r1}, 0 offen sc1"
    a(f"s_lshl_b32 {sT0}, {sN2}, 8\nv_lshl_add_u32 {vS1[0]}, {vN1}, 3, {sT0}")
    def rds(b, c): return [f"ds_read_b128 {bX[b][4*k:4*k+4]}, {vXs[2*b+k]} offset:{16384*(c%4)}" for k in range(2)] + \
                          [f"ds_read_b128 {bF[b][4*i:4*i+4]}, {vFs} offset:{8192*(c%5) + 4096*b + 1024*i}" for i in range(4)]
    for c in range(10):
        a(".p2align 3\ns_waitcnt lgkmcnt(0)\ns_barrier")
        if c == 0:
            ST(2)
            for l in rds(0, 0): a(l)
        else: half(1, rds(0, c))
        if c == 5:
            a("s_nop 7")
            for k in range(4):
                for i in range(16): a(f"v_xor_b32 {acc[k][i]}, {vSg}, {acc[k][i]}")
        a("s_waitcnt lgkmcnt(0)\ns_nop 0")
        half(0, rds(1, c), c == 0)
        if c == tsn: a(sld)
    a("s_waitcnt lgkmcnt(0)")
    half(1, [])
    ST(3)
    tagready()
    augX = bX[0][4:8]; augF = bX[1][0:4]; rs = bF[0]
    a(f"""
    s_mov_b32 {sC}, 0
    S_tst:
    s_waitcnt vmcnt(0)
    v_cmp_ne_u32 {sMk2}, {sTag}, {vU[1]}
    s_add_u32 {sC}, {sC}, 1
    s_cmp_eq_u64 {sMk2}, 0
    s_cbranch_scc1 S_tst_ok
    s_cmp_ge_u32 {sC}, {C.SPIN_MAX}
    s_cbranch_scc1 S_tst_ok
    s_sleep 2
    {sld}
    s_branch S_tst
    S_tst_ok:
    v_and_b32 {vU[3]}, 0xffff0000, {vU[0]}
    v_and_b32 {vT1}, 0xffff, {vU[0]}
    v_rcp_f32 {vT2}, {vU[3]}
    v_cndmask_b32 {augX[0]}, 0, {vT1}, vcc
    s_lshl_b32 {sT0}, {sW}, 7
    s_add_u32 {sT0}, {sT0}, {RS_OFF}
    v_lshl_add_u32 {vT0}, {vN1}, 2, {sT0}
    ds_write_b32 {vT0}, {vT2}
    v_lshl_add_u32 {vT0}, {vH}, 4, {sT0}
    """)
    for i in range(4): a(f"ds_read_b128 {rs[4*i:4*i+4]}, {vT0} offset:{32*i}")
    a(f"""
    v_mov_b32 {vT2}, 0xc3a0
    v_cndmask_b32 {augF[0]}, 0, {vT2}, {sMask}
    """)
    for i in range(1, 4): a(f"v_mov_b32 {augX[i]}, 0\nv_mov_b32 {augF[i]}, 0")
    a(f"s_nop 1\n{MF32} {acc[0]}, {augX}, {augF}, {acc[0]}\n{MF32} {acc[2]}, {augX}, {augF}, {acc[2]}\ns_waitcnt lgkmcnt(0)\n.p2align 3")
    for i in range(0, 16, 2): a(f"v_pk_mul_f32 {Rv[i:i+2]}, {Rv[i:i+2]}, {rs[i:i+2]}")
    for i in range(8): a(f"v_cvt_pk_bf16_f32 {Rv[i]}, {Rv[2*i]}, {Rv[2*i+1]}")
    for i in range(0, 16, 2):
        a(f"v_pk_fma_f32 {tt[i:i+2]}, {acc[3][i:i+2]}, {vMu}, {acc[1][i:i+2]}\nv_pk_fma_f32 {acc[3][i:i+2]}, {acc[1][i:i+2]}, {vMu}, {acc[3][i:i+2]} {NEG0}")
    for i in range(0, 16, 2):
        a(f"v_pk_add_f32 {acc[1][i:i+2]}, {acc[0][i:i+2]}, {acc[2][i:i+2]} {NEG1}\nv_pk_add_f32 {acc[0][i:i+2]}, {acc[0][i:i+2]}, {acc[2][i:i+2]}")
    cv = lambda t, src: [f"v_cvt_pk_bf16_f32 {B[8*t+i]}, {src[2*i]}, {src[2*i+1]}" for i in range(8)]
    mf = lambda t: [f"{MF32} {acc[t]}, {Rv[0:4]}, {B[8*t:8*t+4]}, 0", f"{MF32} {acc[t]}, {Rv[4:8]}, {B[8*t+4:8*t+8]}, {acc[t]}"]
    for l in cv(2, tt) + cv(0, acc[0])[0:2]: a(l)
    for l in weave(mf(2) + mf(0) + mf(1) + mf(3), (cv(0, acc[0])[2:] + cv(1, acc[1]) + cv(3, acc[3]), [4, 4, 4, 4, 4, 2, 0, 0]), (["s_nop 1", "s_nop 0"], [0, 0, 0, 0, 0, 2, 0, 0])): a(l)
    def rotate(Cc, Sn):
        a(f"v_mul_f32 {vT0}, {Cc}, {vRot[1]}\nv_mul_f32 {Cc}, {Cc}, {vRot[0]}\nv_fma_f32 {Cc}, -{Sn}, {vRot[1]}, {Cc}\nv_fma_f32 {Sn}, {Sn}, {vRot[0]}, {vT0}")
    a(f"s_mul_i32 {sT1}, {sN2}, {C.V_ROW}\ns_nop 9\ns_cmp_lg_u32 {sUnit}, 0\ns_cbranch_scc1 S_dgen")
    a(f"v_mov_b32 {vT1}, {acc[2][1]}\nv_mov_b32 {vT2}, {acc[3][1]}")
    rotate(vT1, vT2)
    for i in range(16):
        c_, s_ = (vT1, vT2) if i == 1 else (acc[2][i], acc[3][i])
        a(f"v_cvt_pk_bf16_f32 {tt[i]}, {c_}, {s_}")
    for k in (2, 3):
        for i in range(0, 16, 2): a(f"v_pk_mul_f32 {acc[k][i:i+2]}, {acc[k][i:i+2]}, {vMu}")
    for q in range(4): a(f"s_add_u32 {sT0}, {sT1}, {2*q*64*C.V_ROW}\nbuffer_store_dwordx4 {tt[4*q:4*q+4]}, {vO[2]}, {r0}, {sT0} offen sc1")
    a("S_dgen:")
    rotate(acc[0][1], acc[2][1]); rotate(acc[1][1], acc[3][1])
    for q in range(4):
        a(f"s_add_u32 {sT0}, {sT1}, {2*q*64*C.V_ROW}")
        for k in range(2):
            for i in range(4*q, 4*q + 4): a(f"v_cvt_pk_bf16_f32 {acc[k][i]}, {acc[k][i]}, {acc[2+k][i]}")
            a(f"buffer_store_dwordx4 {acc[k][4*q:4*q+4]}, {vO[k]}, {r0}, {sT0} offen sc1")
    ST(4)
    a(f"s_lshl_b32 {sCk}, {sUnit}, 6\ns_add_u32 {sCk}, {sCk}, {sN2}\ns_add_u32 {sCk}, {sCk}, {C.FV}\ns_lshl_b32 {sCk}, {sCk}, 7")
    V.release(mark); S.release(smark)
    VA = 0; XA = 32768; PO = 65536; WA = C.WA_OFF; QA = 3*C.P_GRP
    vH = V(); vR16 = V(); vG = V(); vStep = V(); vBase = V(); vK2 = V(); vA = V(); vA2 = V(); vFl = V(4); vFa = V(4)
    GT = V(16)
    m3 = V.mark()
    vM = V(); vKd = V(); vPw = V(2); vRot = V(2); TAB = V(32); DAT = V(64); acc = [GT, V(16)]; Wf = [DAT[32:48], DAT[48:64]]; TMP = DAT
    sT, sKap, sTm, sX, sPo, sTl, sG0 = [S() for _ in range(7)]; sRet = S(2); sFn = S(2)
    def trig(lst, fn):
        done_ = set()
        for d, r, o in lst:
            if o and str(r) not in done_: a(f"v_fmamk_f32 {r}, {vStep}, {fhex(o)}, {vBase}"); done_.add(str(r))
        for d, r, o in lst: a(fn(d, r if o else vBase))
    cs_ = lambda d, r: f"v_cos_f32 {d[0]}, {r}\nv_sin_f32 {d[1]}, {r}"
    co_ = lambda d, r: f"v_cos_f32 {d}, {r}"
    a(f"""
    S_t2:
    s_lshr_b32 {sT}, s2, 3
    s_sub_u32 {sT}, {sT}, 20
    s_lshr_b32 {sTm}, {sW}, 2
    v_lshrrev_b32 {vH}, 5, {vL}
    v_and_b32 {vR16}, 15, {vL}
    v_lshrrev_b32 {vG}, 4, {vL}
    s_and_b32 {sKap}, s2, 7
    s_lshl_b32 {sKap}, {sKap}, 1
    s_add_u32 {sKap}, {sKap}, {sTm}
    v_and_b32 {vM}, 31, {vL}
    v_lshrrev_b32 {vT0}, 1, {vM}
    s_lshl_b32 {sT0}, {sQ}, 4
    v_add_u32 {vT0}, {sT0}, {vT0}
    v_cvt_f32_u32 {vStep}, {vT0}
    v_lshlrev_b32 {vPw[0]}, 8, {vT0}
    v_mul_f32 {vT2}, {fhex(1/128)}, {vStep}
    v_and_b32 {vT0}, 1, {vM}
    v_cos_f32 {vRot[0]}, {vT2}
    v_sin_f32 {vRot[1]}, -{vT2}
    v_lshlrev_b32 {vT1}, 31, {vT0}
    v_xor_b32 {vRot[1]}, {vT1}, {vRot[1]}
    v_lshl_add_u32 {vT1}, {vH}, 1, {vT0}
    s_lshr_b32 {sT0}, {sKap}, 1
    s_and_b32 {sT0}, {sT0}, 2
    v_xor_b32 {vT1}, {sT0}, {vT1}
    v_and_b32 {vT2}, 6, {vM}
    v_xor_b32 {vT1}, {vT1}, {vT2}
    v_lshl_add_u32 {vPw[0]}, {vT1}, 4, {vPw[0]}
    s_lshl_b32 {sX}, {sTm}, 14
    s_add_u32 {sT0}, {sX}, {PO}
    v_add_u32 {vPw[0]}, {sT0}, {vPw[0]}
    v_xor_b32 {vPw[1]}, 64, {vPw[0]}
    s_add_u32 {sX}, {sX}, {XA}
    v_lshlrev_b32 {vT1}, 1, {vH}
    v_mul_f32 {vStep}, {fhex(-1/64)}, {vStep}
    v_cvt_f32_u32 {vT0}, {vT0}
    v_cvt_f32_u32 {vT1}, {vT1}
    v_mul_f32 {vT2}, {fhex(8.0)}, {vStep}
    v_mul_f32 {vBase}, {fhex(0.25)}, {vT0}
    v_cos_f32 {vT2}, {vT2}
    v_fmac_f32 {vBase}, {vT1}, {vStep}
    v_add_f32 {vK2}, {vT2}, {vT2}
    """)
    st = [[DAT[8*k+2*i:8*k+2*i+2] for i in range(4)] for k in range(2)]
    trig([(st[s][jj], st[s][jj][1], 8*s + (jj % 2) + 4*(jj // 2)) for s in range(2) for jj in range(4)], cs_)
    for s in range(8):
        if s >= 2:
            for jj in range(8): a(f"v_fma_f32 {DAT[8*(s%2)+jj]}, {DAT[8*(1-s%2)+jj]}, {vK2}, -{DAT[8*(s%2)+jj]}")
        for jj in range(4): a(f"v_cvt_pk_bf16_f32 {TAB[4*s+jj]}, {st[s%2][jj][0]}, {st[s%2][jj][1]}")
    a(f"s_cmp_ge_u32 {sW}, 4\ns_cbranch_scc1 S_nofl\ns_waitcnt vmcnt(0)")
    flag(sCk)
    a("S_nofl:")
    def w2touch():
        a.srd(r0, pW2[0], pW2[1], C.W2_BYTES)
        a(f"""
        s_lshl_b32 {sT0}, {sT}, 2
        s_add_u32 {sT0}, {sT0}, {sQ}
        s_mul_i32 {sT0}, {sT0}, {108*128}
        s_mul_i32 {sT1}, {sJ}, {864*1280}
        s_add_u32 {sT0}, {sT0}, {sT1}
        s_add_u32 {sT0}, {sT0}, {3456*128}
        v_min_u32 {vT0}, 53, {vL}
        v_lshlrev_b32 {vT0}, 8, {vT0}
        buffer_load_dword {vPf}, {vT0}, {r0}, {sT0} offen
        buffer_load_dword {vPf}, {vT0}, {r0}, {sT0} offen offset:128
        """)
    a(f"s_cmp_eq_u32 {sTm}, 0\ns_cbranch_scc1 S_now2")
    w2touch()
    a(f"S_now2:\ns_cmp_ge_u32 {sT}, 11\ns_cbranch_scc1 S_not2")
    a.srd_off(r2, pWS, C.WS_V, C.V_BYTES)
    a(f"""
    s_cmp_gt_u32 {sT}, 5
    s_cselect_b32 {sT0}, 1, 0
    v_and_b32 {vT1}, 1, {vG}
    v_xor_b32 {vT1}, {sT0}, {vT1}
    v_lshl_add_u32 {vKd}, {vR16}, 1, {vT1}
    s_sub_u32 {sT0}, 10, {sT}
    s_cmp_eq_u32 {sT}, 5
    s_cselect_b32 {sT0}, 0, {sT0}
    s_min_u32 {sT0}, {sT0}, {sT}
    s_lshl_b32 {sT0}, {sT0}, 6
    s_add_u32 {sT0}, {sT0}, {C.FV}
    s_lshl_b32 {sT1}, {sW}, 3
    s_add_u32 {sT0}, {sT0}, {sT1}
    v_and_b32 {vT0}, 7, {vL}
    v_add_lshl_u32 {vA2}, {vT0}, {sT0}, 7
    v_mul_u32_u24 {vT1}, {C.V_ROW-512}, {vH}
    v_add_u32 {vT1}, {vT1}, {vL16}
    s_cmp_eq_u32 {sT}, 5
    s_cselect_b32 {sT0}, 8, 32
    v_cmp_gt_u32 vcc, {sT0}, {vM}
    v_mov_b32 {vT0}, {C.BIG}
    s_nop 0
    v_cndmask_b32 {vT1}, {vT0}, {vT1}, vcc
    s_and_b32 {sT0}, s2, 7
    s_lshl_b32 {sT0}, {sT0}, 3
    s_add_u32 {sT0}, {sT0}, {sW}
    s_mul_i32 {sT0}, {sT0}, {8*C.V_ROW}
    s_lshl_b32 {sT1}, {sT}, 9
    s_add_u32 {sT0}, {sT0}, {sT1}
    s_lshl_b32 m0, {sW}, 12
    """)
    ST(5)
    a(f"s_cmp_lt_u32 {sW}, 4\ns_cbranch_scc1 S_now\ns_waitcnt vmcnt(0)\nS_now:\ns_barrier")
    poll("S_vp", [vA2], vFl, nap)
    ST(1, 3)
    for i in range(4): a(f"s_add_u32 {sT1}, {sT0}, {i*(2*C.V_ROW-1024)}\nbuffer_load_dwordx4 {vT1}, {r2}, {sT1} offen offset:{1024*i} sc1 lds")
    a.srd_off(r2, pWS, C.WS_P, C.P_BYTES)
    a(f"""
    v_lshlrev_b32 {vA}, 4, {vKd}
    v_lshl_add_u32 {vA}, {vH}, 10, {vA}
    s_lshl_b32 {sT0}, {sTm}, 3
    v_add_u32 {vA}, {sT0}, {vA}
    s_lshl_b32 {sT0}, {sW}, 12
    s_add_u32 {sT0}, {sT0}, {WA}
    v_lshl_add_u32 {vA2}, {vKd}, 1, {sT0}
    v_lshl_add_u32 {vA2}, {vH}, 7, {vA2}
    """)
    wr = [f"ds_read_u16_d16_hi {Wf[sg][2*e+ar]}, {vA2} offset:{2048*sg + 1024*ar + 64*((e%2) + 4*(e//2))}" for e in range(8) for sg in range(2) for ar in range(2)]
    for l in wr: a(l)
    a("s_waitcnt vmcnt(0) lgkmcnt(0)\ns_barrier")
    ST(2, 3)
    vr = lambda s: [f"ds_read_b64 {DAT[8*(s%4)+2*p:8*(s%4)+2*p+2]}, {vA} offset:{(8*s + (0, 4, 1, 5)[p])*512}" for p in range(4)]
    sw = lambda s: [f"v_swap_b32 {DAT[8*(s%4)+1]}, {DAT[8*(s%4)+4]}", f"v_swap_b32 {DAT[8*(s%4)+3]}, {DAT[8*(s%4)+6]}"]
    for s in range(3):
        for l in vr(s): a(l)
    a("s_waitcnt lgkmcnt(8)")
    for l in sw(0): a(l)
    for s in range(8):
        if s < 7:
            a(f"s_waitcnt lgkmcnt({4*min(1, 6-s)})")
            for l in sw(s + 1) + (vr(s + 3) if s + 3 < 8 else []): a(l)
        for sg in range(2):
            a(f"{MF32} {acc[sg]}, {TAB[4*s:4*s+4]}, {DAT[8*(s%4)+4*sg:8*(s%4)+4*sg+4]}, {acc[sg] if s else 0}")
    tm = [DAT[2*i:2*i+2] for i in range(6)]; out = [DAT[16:24], DAT[24:32]]
    def cmul(y, x, w):
        return [f"v_pk_mul_f32 {y}, {x}, {w} op_sel_hi:[0,1]", f"v_pk_fma_f32 {y}, {x}, {w}, {y} op_sel:[1,1,0] op_sel_hi:[1,0,1] neg_hi:[0,1,0]"]
    a(f"""
    v_cmp_eq_u32 vcc, 0, {vKd}
    v_add_u32 {vA2}, {sX}, {vL16}
    s_lshl_b32 {sT0}, {sQ}, 11
    v_add_u32 {vA}, {sT0}, {vA2}
    s_nop 11
    s_barrier
    s_waitcnt lgkmcnt(0)
    s_cmp_eq_u32 {sKap}, 0
    s_cbranch_scc1 S_mid0
    """)
    for e in range(8):
        A_, B_ = acc[0][2*e:2*e+2], acc[1][2*e:2*e+2]
        a(f"v_pk_add_f32 {tm[0]}, {A_}, {B_} op_sel:[0,1] op_sel_hi:[1,0] neg_lo:[0,1]")
        a(f"v_pk_add_f32 {tm[1]}, {A_}, {B_} op_sel:[0,1] op_sel_hi:[1,0] neg_hi:[0,1]")
        m1 = cmul(tm[2], tm[0], Wf[0][2*e:2*e+2]); m2 = cmul(tm[3], tm[1], Wf[1][2*e:2*e+2])
        a("\n".join([m1[0], m2[0], m1[1], m2[1]]))
        a(f"v_pk_add_f32 {tm[4]}, {tm[2]}, {tm[3]}")
        a(f"v_pk_add_f32 {tm[5]}, {tm[2]}, {tm[3]} neg_lo:[0,1] neg_hi:[0,1]")
        a(f"v_cvt_pk_bf16_f32 {out[0][e]}, {tm[4][0]}, {tm[4][1]}\nv_cvt_pk_bf16_f32 {out[1][e]}, {tm[5][1]}, -{tm[5][0]}")
    a("s_branch S_mide\nS_mid0:")
    for e in range(8):
        m1 = cmul(tm[2], acc[0][2*e:2*e+2], Wf[0][2*e:2*e+2]); m2 = cmul(tm[3], acc[1][2*e:2*e+2], Wf[1][2*e:2*e+2])
        a("\n".join([m1[0], m2[0], m1[1], m2[1]]))
        a(f"v_cvt_pk_bf16_f32 {out[0][e]}, {tm[2][0]}, {tm[2][1]}\nv_cvt_pk_bf16_f32 {out[1][e]}, {tm[3][0]}, {tm[3][1]}")
    a(f"S_mide:\ns_cmp_lg_u32 {sT}, 5\ns_cbranch_scc1 S_nomask")
    for i in range(16): a(f"v_cndmask_b32 {DAT[16+i]}, 0, {DAT[16+i]}, vcc")
    a("S_nomask:")
    for sg in range(2):
        for e in range(2): a(f"ds_write_b128 {vA}, {out[sg][4*e:4*e+4]} offset:{8192*sg + 1024*e}")
    a("s_waitcnt lgkmcnt(0)\ns_barrier")
    ST(3, 3)
    fr = lambda sg, s: DAT[8*s+4*sg:8*s+4*sg+4]
    xr = lambda s: [f"ds_read_b128 {fr(sg, s)}, {vA2} offset:{8192*sg + 1024*s}" for sg in range(2)]
    for s in range(7):
        for l in xr(s): a(l)
    for s in range(8):
        a(f"s_waitcnt lgkmcnt({min(12, 14 - 2*s)})")
        for sg in range(2): a(f"{MF32} {acc[sg]}, {fr(sg, s)}, {TAB[4*s:4*s+4]}, {acc[sg] if s else 0}")
        if s == 0:
            for l in xr(7): a(l)
    a(f"""
    v_lshrrev_b32 {vT0}, 4, {vL}
    v_lshlrev_b32 {vT2}, 5, {vT0}
    v_xor_b32 {vA}, {vT2}, {vL16}
    s_lshl_b32 {sT0}, {sW}, 12
    s_add_u32 {sT0}, {sT0}, {PO}
    v_add_u32 {vA}, {sT0}, {vA}
    v_mul_u32_u24 {vA2}, {C.P_GRP}, {vT0}
    v_bfe_u32 {vT0}, {vL}, 3, 1
    v_mul_u32_u24 {vT0}, {11*2048}, {vT0}
    v_and_b32 {vT2}, 0x70, {vL16}
    v_add3_u32 {vA2}, {vA2}, {vT0}, {vT2}
    s_cmp_gt_u32 {sT}, 5
    s_subb_u32 {sPo}, {sT}, 0
    s_cmp_eq_u32 {sT}, 5
    s_cselect_b32 {sPo}, 10, {sPo}
    s_lshl_b32 {sPo}, {sPo}, 4
    s_add_u32 {sPo}, {sPo}, {sKap}
    s_lshl_b32 {sPo}, {sPo}, 7
    s_mul_i32 {sT0}, {sQ}, {16*C.P_GRP}
    s_add_u32 {sPo}, {sPo}, {sT0}
    s_cmp_lg_u32 {sKap}, 0
    s_cbranch_scc1 S_norot
    """)
    for i in range(16): a(f"v_mul_f32 {DAT[i]}, {acc[1][i]}, {vRot[0]}")
    for i in range(16): a(f"v_fmac_f32_dpp {DAT[i]}, {acc[1][i]}, {vRot[1]} quad_perm:[1,0,3,2] row_mask:0xf bank_mask:0xf")
    for i in range(16): a(f"v_mov_b32 {acc[1][i]}, {DAT[i]}")
    a("S_norot:")
    for sg in range(2):
        for i in range(8): a(f"v_cvt_pk_bf16_f32 {acc[sg][i]}, {acc[sg][2*i]}, {acc[sg][2*i+1]}")
        for p in range(2): a(f"ds_write_b128 {vPw[sg]}, {acc[sg][4*p:4*p+4]} offset:{128*p}")
    for i in range(4): a(f"ds_read_b128 {DAT[4*i:4*i+4]}, {vA} offset:{1024*i}")
    for i in range(4):
        a(f"s_waitcnt lgkmcnt({3-i})\nbuffer_store_dwordx4 {DAT[4*i:4*i+4]}, {vA2}, {r2}, {sPo} offen sc1\ns_add_u32 {sPo}, {sPo}, {4*C.P_GRP}")
    ST(4, 3)
    a(f"""
    s_and_b32 {sCk}, s2, 7
    s_mul_i32 {sCk}, {sCk}, 11
    s_add_u32 {sCk}, {sCk}, {sT}
    s_add_u32 {sCk}, {sCk}, {C.FP}
    s_lshl_b32 {sCk}, {sCk}, 7
    """)
    a(f"s_cmp_lg_u32 {sW}, 0\ns_cselect_b32 {sCk}, {C.BIG}, {sCk}\ns_waitcnt vmcnt(0)\ns_barrier")
    flag(sCk)
    ST(6)
    done()
    a(f"""
    S_not2:
    s_sub_u32 {sT0}, s2, {sW}
    s_cmp_lg_u32 {sT0}, 255
    s_cbranch_scc1 S_fin
    v_lshlrev_b32 {vT1}, 7, {vL}
    """)
    for i in range(4): a(f"v_add_u32 {vFa[i]}, {8192*i}, {vT1}")
    poll("S_ep", [vFa[i] for i in range(4)], vFl, 8)
    a(f"s_mov_b32 {sT0}, {C.FE*128}")
    flag(sT0)
    a("S_fin:")
    done()
```

```python
from asmlib import *
import math
from k1 import weave, row_stats_finish, MF32, MF16, MF4
X_BYTES, W1_BYTES, W_BYTES, W2_BYTES = 2048*1280, 640*3456, 2048*642, 1728*1280
H_BYTES = 64*54*2048
V_ROW = 5632; V_BYTES = 8*64*V_ROW
P_GRP = 22*2048; P_BYTES = 64*P_GRP
ZW = 5632; Z_BYTES = 160*4*ZW
Y_BYTES = 64*40*1536
ST_BYTES = 64*256; CS_BYTES = 27*1024
FS, FH, FV, FP, FY, FE = 0, 256, 256+576, 256+576+320, 256+576+320+88, 256+576+320+88+1024
FL_BYTES = (FE + 1)*128
WS_H = 0; WS_V = 0x6C0000; WS_P = 0x980000; WS_Z = 0xC40000; WS_Y = 0xFC0000; WS_ST = 0x1380000; WS_CS = 0x1390000; WS_FL = 0x13A0000
TAG_STEP = 0x9E3779B9; SPIN_MAX = 1 << 17
S1 = 40960; S2 = 49152
XL_OFF = 3*S2
LDS = XL_OFF + 16384
WA_OFF = 114688
BIG = 0x7f000000
NEG2 = "neg_lo:[0,0,1] neg_hi:[0,0,1]"

def gen(stamp=False, rot=(2, 20, 5, 10), fine=0, local=0, thr=1, nap=2, hpre=0, vpw=7, ntouch=2, wthr=4, zw=0, ppre=4, ynap=2, osc='sc1', nt1=2, vpre=20, dsl=(0, 0, 10), fln=2, sn=16, fpos=1, tsplit=2, t3prio=0, rn=2, npipe=4, tdbg='', dsl2=0, tsn=5, wtc=2, w2c=2, b0first=True, nreg=0, nlate=0, ffirst=True, fullf=True):
    a = Asm("S"); ST0 = Stamps(a, 1, stamp)
    def ST(k, f=0):
        if k == 0 or f == fine: ST0(k)
    kname = NAME + "_kernel"
    S = Alloc('s', 24, 72); V = Alloc('v', 1, 256)
    pX, pWr, pWi, pW1, pB1, pW2, pB2, pOut, pWS = [Reg('s', b, 2) for b in (4, 6, 8, 12, 14, 16, 18, 20, 22)]
    r0 = S(4); r1 = S(4); r2 = S(4); rF = S(4)
    sW, sQ, sJ, sRb, sM, sTag, sCk, sT0, sT1, sT2, sC, sRole = [S() for _ in range(12)]
    sMask = S(2)
    vL = V(); vL16 = V(); vT0 = V(); vT1 = V(); vT2 = V(); vTag = V(); vPf = V()
    def done():
        ST0.flush(pWS, sW); a("s_endpgm")
    def flag(addr, fl="sc1"):
        if fullf: a(f"v_lshl_add_u32 {vT0}, {vL}, 2, {addr}\ns_mov_b32 exec_hi, 0\nbuffer_store_dword {vTag}, {vT0}, {rF}, 0 offen {fl}\ns_mov_b32 exec_hi, -1")
        else: a(f"v_mov_b32 {vT0}, {addr}\ns_mov_b64 exec, 1\nbuffer_store_dword {vTag}, {vT0}, {rF}, 0 offen {fl}\ns_mov_b64 exec, -1")
    def stage_chk(reg, st_):
        if 'H' in tdbg: a(f"v_cmp_ne_u32 vcc, {reg}, {reg}"); return
        a(f"v_subrev_u32 {reg}, {vTag}, {reg}\nv_subrev_u32 {reg}, {st_}, {reg}\nv_cmp_lt_u32 vcc, {2 - st_}, {reg}")
    def poll(lab, addrs, tmp, nap_, st_=None):
        a(f"s_mov_b32 {sC}, 0\n{lab}:")
        for i, ad in enumerate(addrs): a(f"buffer_load_dword {tmp[i]}, {ad}, {rF}, 0 offen sc1")
        a(f"s_add_u32 {sC}, {sC}, 1\ns_waitcnt vmcnt(0)")
        if st_ is None:
            for i in range(len(addrs)): a(f"v_xor_b32 {tmp[i]}, {tmp[i]}, {vTag}")
            for i in range(1, len(addrs)): a(f"v_or_b32 {tmp[0]}, {tmp[0]}, {tmp[i]}")
            a(f"v_cmp_ne_u32 vcc, 0, {tmp[0]}")
        else: stage_chk(tmp[0], st_)
        a(f"""
        s_cmp_ge_u32 {sC}, {SPIN_MAX}
        s_cbranch_scc1 {lab}_e
        s_cbranch_vccz {lab}_e
        s_mov_b64 exec, vcc
        s_sleep {nap_}
        s_branch {lab}
        {lab}_e:
        s_mov_b64 exec, -1
        {lab}_ok:
        """)
    def tagready():
        a(f"s_add_u32 {sTag}, {sTag}, {TAG_STEP}\nv_mov_b32 {vTag}, {sTag}")
    a("s_cmp_lt_u32 s2, 256\ns_cbranch_scc1 S_go\ns_endpgm\nS_go:")
    ST(0); ST0.init()
    npz, A_, B_, C_ = rot
    a(f"""
    s_load_dwordx16 s[4:19], s[0:1], 0
    s_load_dwordx2 {pOut}, s[0:1], 64
    s_load_dwordx2 {pWS}, s[0:1], 80
    s_getpc_b64 {r2[0:2]}
    S_pc:
    s_sub_u32 {r2[0]}, {r2[0]}, S_pc-{kname}
    s_subb_u32 {r2[1]}, {r2[1]}, 0
    s_mov_b32 {r2[2]}, code_end-{kname}
    s_mov_b32 {r2[3]}, 0x20000
    s_lshr_b32 {sT0}, s2, 3
    s_lshl_b32 {sT0}, {sT0}, 7
    v_lshl_add_u32 {vT0}, v0, 12, {sT0}
    buffer_load_dword {vPf}, {vT0}, {r2}, 0 offen
    v_lshrrev_b32 {vT0}, 6, v0
    v_and_b32 {vL}, 63, v0
    v_readfirstlane_b32 {sW}, {vT0}
    v_lshlrev_b32 {vL16}, 4, {vL}
    s_and_b32 {sJ}, s2, 1
    s_bfe_u32 {sT0}, s2, 0x20001       ; i
    s_bfe_u32 {sT1}, s2, 0x20003
    s_lshl_b32 {sRb}, {sT0}, 2
    s_add_u32 {sRb}, {sRb}, {sT1}
    s_lshr_b32 {sM}, s2, 5
    s_add_u32 {sCk}, {sM}, {sT1}
    s_and_b32 {sCk}, {sCk}, {npz-1}
    s_mul_i32 {sCk}, {sCk}, {A_}
    s_mul_i32 {sC}, {sT0}, {B_}
    s_add_u32 {sCk}, {sCk}, {sC}
    s_mul_i32 {sC}, {sJ}, {C_}
    s_add_u32 {sCk}, {sCk}, {sC}
    s_lshr_b32 {sCk}, {sCk}, 2
    s_mul_i32 {sC}, {sCk}, 26
    s_lshr_b32 {sC}, {sC}, 8
    s_mul_i32 {sC}, {sC}, 10
    s_sub_u32 {sCk}, {sCk}, {sC}
    s_and_b32 {sQ}, {sW}, 3
    s_mul_i32 {sT0}, {sJ}, 3
    s_add_u32 {sT0}, {sT0}, 4
    s_cmp_eq_u32 {sM}, {sT0}
    s_cbranch_scc1 S_colsum
    s_cmp_lt_u32 {sW}, 4
    s_cbranch_scc1 S_comp1
    """)
    def common_after_kernarg():
        a.srd_off(rF, pWS, WS_FL, FL_BYTES)
        a(f"s_load_dword {sTag}, {rF[0:2]}, {FE*128}")
    mark = V.mark(); smark = S.mark()
    vOffA = V(4); vOffB = V(2); sSoA, sSoB, sMA, sMB = S(), S(), S(), S(); sRet = S(2)
    a(f"""
    s_setprio 1
    v_lshrrev_b32 {vT0}, 3, {vL}
    v_mul_u32_u24 {vOffB[0]}, 3456, {vT0}
    v_mul_u32_u24 {vT0}, {64*1280}, {vT0}
    v_lshrrev_b32 {vT1}, 4, {vL}
    v_and_b32 {vT2}, 7, {vL}
    v_xor_b32 {vOffA[0]}, {vT1}, {vT2}
    v_lshl_add_u32 {vOffA[0]}, {vOffA[0]}, 4, {vT0}
    v_xor_b32 {vT0}, 64, {vOffA[0]}
    v_add_u32 {vOffA[1]}, {8*64*1280 - 1024}, {vT0}
    v_add_u32 {vOffA[2]}, {16*64*1280 - 2048}, {vOffA[0]}
    v_add_u32 {vOffA[3]}, {24*64*1280 - 3072}, {vT0}
    v_and_b32 {vT1}, 1, {vT1}
    v_lshlrev_b32 {vT1}, 1, {vT1}
    v_xor_b32 {vT1}, {vT1}, {vT2}
    v_lshl_add_u32 {vOffB[0]}, {vT1}, 4, {vOffB[0]}
    v_xor_b32 {vOffB[1]}, 64, {vOffB[0]}
    v_add_u32 {vOffB[1]}, {8*3456 - 1024}, {vOffB[1]}
    s_lshl_b32 {sT0}, {sRb}, 2
    s_add_u32 {sT0}, {sT0}, {sQ}
    s_mul_i32 {sSoA}, {sT0}, 1280
    s_lshl_b32 {sT0}, {sCk}, 7
    s_add_u32 {sSoA}, {sSoA}, {sT0}
    s_lshl_b32 {sT0}, {sJ}, 2
    s_add_u32 {sT0}, {sT0}, {sM}
    s_mul_i32 {sSoB}, {sT0}, 384
    s_lshl_b32 {sT0}, {sCk}, 2
    s_add_u32 {sT0}, {sT0}, {sQ}
    s_mul_i32 {sT0}, {sT0}, {16*3456}
    s_add_u32 {sSoB}, {sSoB}, {sT0}
    s_lshl_b32 {sMA}, {sQ}, 12
    s_lshl_b32 {sMB}, {sQ}, 11
    s_waitcnt lgkmcnt(0)
    """)
    a.srd(r0, pX[0], pX[1], X_BYTES)
    a.srd(r1, pW1[0], pW1[1], W1_BYTES)
    def xdma(base):
        a(f"s_add_u32 m0, {sMA}, {base}\ns_add_u32 {sCk}, {sCk}, 1")
        for i in range(4): a(f"buffer_load_dwordx4 {vOffA[i]}, {r0}, {sSoA} offen offset:{1024*i} lds")
    def adv(w):
        a(f"s_cmp_eq_u32 {sCk}, 10\ns_cselect_b32 {sT0}, -9, 1\ns_lshl_b32 {sT1}, {sT0}, 7\ns_add_u32 {sSoA}, {sSoA}, {sT1}")
        if w: a(f"s_mul_i32 {sT0}, {sT0}, {64*3456}\ns_add_u32 {sSoB}, {sSoB}, {sT0}")
    def g1chunk(c):
        base = (c % 3) * S1
        xdma(base)
        for u in range(3):
            a(f"s_add_u32 m0, {sMB}, {base + 16384 + u*(8192 - 128)}\ns_nop 0")
            for i in range(2): a(f"buffer_load_dwordx4 {vOffB[i]}, {r1}, {sSoB} offen offset:{1024*i + 128*u} lds")
        adv(True)
    def started():
        a(f"s_lshl_b32 {sT0}, s2, 7\ns_cmp_lg_u32 {sW}, 4\ns_cselect_b32 {sT0}, {BIG}, {sT0}")
        flag(sT0)
    a(f"s_cmp_ge_u32 {sM}, 5\ns_cbranch_scc1 S_t1load")
    g1chunk(0)
    common_after_kernarg()
    for k in range(tsplit): a(f"s_call_b64 {sRet}, S_tab{k}")
    g1chunk(1)
    for k in range(tsplit, 4): a(f"s_call_b64 {sRet}, S_tab{k}")
    for c in range(8):
        a(f"s_waitcnt vmcnt({11 if c == 2 else 10}){' lgkmcnt(0)' if c else ''}\ns_barrier")
        if c >= 1: ST(c, 4)
        if c == 1: tagready(); started()
        g1chunk(c + 2)
    vOffW = V(); vPoll = V(); vFl = V(2); vR16 = V(); vG = V(); vStep = V(); vBase = V(); vA = V(); vKf = V(); vPh = V(); vDf = V(); vGk = V(2)
    G = V(80); G10 = V(4); TMP = V(16); ac3 = V(32); buf = V(48); V(24*max(0, nreg - 4) + 2); WR = Reg('v', TMP.base, 24*max(nreg, 1)); vPut = V()
    sSoW, sSoH, sMW, sMH, sSrc, sOwn, sC0, sG0 = [S() for _ in range(8)]; vKs = V(); sPb = S()
    a(f"""
    s_add_u32 {sOwn}, {sM}, 1
    s_sub_u32 {sOwn}, {sOwn}, {sJ}
    s_min_u32 {sOwn}, {sOwn}, 1
    s_add_u32 {sOwn}, {sOwn}, 1
    S_load2:
    s_lshl_b32 {sC0}, {sM}, 1
    s_sub_u32 {sC0}, {sC0}, {sJ}
    s_cmp_eq_u32 {sOwn}, 2
    s_cselect_b32 {sC0}, {sC0}, 0
    """)
    a.srd(r0, pW2[0], pW2[1], W2_BYTES)
    a.srd_off(r1, pWS, WS_H, H_BYTES)
    a(f"""
    s_mul_i32 {sSoW}, {sJ}, {864*1280}
    v_lshrrev_b32 {vT0}, 3, {vL}
    v_mul_u32_u24 {vT0}, 1280, {vT0}
    v_lshlrev_b32 {vT1}, 1, {vG}
    v_and_b32 {vT2}, 7, {vL}
    v_xor_b32 {vT1}, {vT1}, {vT2}
    v_lshl_add_u32 {vOffW}, {vT1}, 4, {vT0}
    s_lshr_b32 {sT0}, {sQ}, 1
    s_mul_i32 {sT0}, {sT0}, 640
    s_add_u32 {sSoW}, {sSoW}, {sT0}
    s_and_b32 {sT0}, {sQ}, 1
    s_lshl_b32 {sMW}, {sT0}, 11
    s_mul_i32 {sT0}, {sT0}, {16*1280}
    s_add_u32 {sSoW}, {sSoW}, {sT0}
    s_lshl_b32 {sT0}, {sM}, 7
    s_add_u32 {sSoW}, {sSoW}, {sT0}
    s_lshr_b32 {sT0}, {sQ}, 1
    s_mul_i32 {sT0}, {sT0}, 12288
    s_add_u32 {sMW}, {sMW}, {sT0}
    s_mul_i32 {sMH}, {sQ}, 6144
    s_add_u32 {sMH}, {sMH}, 24576
    s_xor_b32 {sT0}, {sG0}, {sQ}
    s_mul_i32 {sSoH}, {sT0}, {54*2048}
    s_mul_i32 {sT0}, {sJ}, {27*2048}
    s_add_u32 {sSoH}, {sSoH}, {sT0}
    s_mul_i32 {sT0}, {sRb}, 36
    s_mul_i32 {sT1}, {sJ}, 18
    s_add_u32 {sT0}, {sT0}, {sT1}
    s_add_u32 {sT0}, {sT0}, {FH}
    v_min_u32 {vT0}, 17, {vL}
    v_add_lshl_u32 {vPoll}, {vT0}, {sT0}, 7
    """)
    a(f"""
    s_mul_i32 {sT0}, {sOwn}, 3
    s_sub_u32 {sT1}, 9, {sOwn}
    v_subrev_u32 {vT0}, {sT0}, {vL}
    v_cmp_le_u32 vcc, {sT1}, {vT0}
    v_subrev_u32 {vT1}, {sT1}, {vT0}
    v_mov_b32 {vKs}, 0
    v_cndmask_b32 {vT0}, {vT0}, {vT1}, vcc
    v_addc_co_u32 {vKs}, vcc, 0, {vKs}, vcc
    v_cmp_le_u32 vcc, {sT1}, {vT0}
    v_subrev_u32 {vT1}, {sT1}, {vT0}
    s_nop 0
    v_cndmask_b32 {vT0}, {vT0}, {vT1}, vcc
    v_addc_co_u32 {vKs}, vcc, 0, {vKs}, vcc
    v_cmp_le_u32 vcc, {sC0}, {vT0}
    v_add_u32 {vT1}, {sOwn}, {vT0}
    s_mul_i32 {sT1}, {sC0}, 3
    v_cndmask_b32 {vT0}, {vT0}, {vT1}, vcc
    v_mad_u32_u24 {vKs}, {vT0}, 3, {vKs}
    v_cmp_gt_u32 vcc, {sT0}, {vL}
    v_add_u32 {vT1}, {sT1}, {vL}
    s_nop 0
    v_cndmask_b32 {vKs}, {vKs}, {vT1}, vcc
    """)
    def issue_w(i, th=None):
        for k in range(3):
            a(f"v_readlane_b32 {sT0}, {vKs}, {3*i + k}\ns_add_u32 m0, {sMW}, {(i % 3)*S2 + 4096*k}\ns_mul_i32 {sSrc}, {sT0}, {32*1280}\ns_add_u32 {sSrc}, {sSrc}, {sSoW}\ns_add_u32 {sT1}, {sSrc}, {8*1280 - 1024}")
            a(f"buffer_load_dwordx4 {vOffW}, {r0}, {sSrc} offen lds\nbuffer_load_dwordx4 {vOffW}, {r0}, {sT1} offen offset:1024 lds")
            if th is not None: a(f"s_waitcnt vmcnt({th})")
    def wget(i, th=None):
        for k in range(3):
            d = WR[24*(i-3) + 8*k:24*(i-3) + 8*k + 8]
            a(f"v_readlane_b32 {sT0}, {vKs}, {3*i + k}\ns_nop 0\ns_mul_i32 {sSrc}, {sT0}, {32*1280}\ns_add_u32 {sSrc}, {sSrc}, {sSoW}\ns_add_u32 {sT1}, {sSrc}, {8*1280}")
            a(f"buffer_load_dwordx4 {d[0:4]}, {vOffW}, {r0}, {sSrc} offen\nbuffer_load_dwordx4 {d[4:8]}, {vOffW}, {r0}, {sT1} offen")
            if th is not None: a(f"s_waitcnt vmcnt({th})")
    def wput(i):
        a(f"s_add_u32 {sT0}, {sMW}, {(i % 3)*S2}\nv_add_u32 {vPut}, {sT0}, {vL16}")
        for k in range(6): a(f"ds_write_b128 {vPut}, {WR[24*(i-3) + 4*k:24*(i-3) + 4*k + 4]} offset:{4096*(k//2) + 1024*(k%2)}")
    inreg = lambda i: 3 <= i < 3 + nreg
    nw = lambda i: 0 if inreg(i) else 6
    def issue_h(i):
        for k in range(3):
            a(f"v_readlane_b32 {sT0}, {vKs}, {3*i + k}\ns_add_u32 m0, {sMH}, {(i % 3)*S2 + 2048*k}\ns_lshl_b32 {sSrc}, {sT0}, 11\ns_add_u32 {sSrc}, {sSrc}, {sSoH}")
            a(f"buffer_load_dwordx4 {vL16}, {r1}, {sSrc} offen sc1 lds\nbuffer_load_dwordx4 {vL16}, {r1}, {sSrc} offen offset:1024 sc1 lds")
    def g1bar(w, lab):
        a(f"s_cmp_eq_u32 {sOwn}, 0\ns_cbranch_scc1 {lab}\n{w}\ns_barrier\n{lab}:")
    a.srd(r2, pX[0], pX[1], X_BYTES)
    a(f"""
    s_and_b32 {sT1}, {sQ}, 1
    s_add_u32 {sT0}, {sG0}, {sT1}
    s_mul_i32 {sT0}, {sT0}, 1280
    s_lshr_b32 {sT1}, {sQ}, 1
    s_mul_i32 {sT1}, {sT1}, 640
    s_add_u32 {sT0}, {sT0}, {sT1}
    s_lshl_b32 {sT1}, {sM}, 7
    s_add_u32 {sT0}, {sT0}, {sT1}
    v_lshrrev_b32 {vT0}, 3, {vL}
    v_xor_b32 {vT1}, {vT0}, {vT2}
    v_mul_u32_u24 {vT0}, {64*1280}, {vT0}
    v_lshl_add_u32 {vT0}, {vT1}, 4, {vT0}
    s_lshl_b32 {sT1}, {sQ}, 12
    s_add_u32 m0, {sT1}, {XL_OFF}
    """)
    for i in range(4): a(f"s_add_u32 {sT1}, {sT0}, {i*(8*64*1280 - 1024)}\nbuffer_load_dwordx4 {vT0}, {r2}, {sT1} offen offset:{1024*i} lds")
    ST(1)
    g1bar("s_waitcnt vmcnt(14)", "S_b8")
    g1bar("s_waitcnt vmcnt(4)", "S_b9"); issue_w(1)
    g1bar("s_nop 0", "S_bs")
    ST(2)
    issue_w(0); issue_w(2, thr)
    for i in range(3 + nlate, 3 + nreg): wget(i, thr)
    a.srd_off(r2, pWS, WS_P, P_BYTES)
    if b0first: g1bar("s_waitcnt vmcnt(0)", "S_b0a")
    if nlate:
        a(f"buffer_load_dword {vFl[1]}, {vPoll}, {rF}, 0 offen sc1")
        for i in range(3, 3 + nlate): wget(i)
        a(f"s_waitcnt vmcnt({6*nlate})"); stage_chk(vFl[1], 0); a("s_cbranch_vccz S_h0_ok")
    poll("S_h0", [vPoll], vFl, nap, 0)
    ST(3)
    for i in range(2):
        a(f"s_cmp_gt_u32 {sOwn}, {i}\ns_cbranch_scc1 S_own{i}"); issue_h(i); a(f"S_own{i}:")
    issue_h(2)
    ST(1, 5)
    if stamp and fine == 5: a("s_waitcnt vmcnt(0)"); ST(2, 5)
    if b0first: a(f"s_cmp_lg_u32 {sOwn}, 0\ns_cbranch_scc1 S_b0b")
    a("s_waitcnt vmcnt(12)\ns_barrier\nS_b0b:\ns_waitcnt vmcnt(6)\ns_barrier")
    ST(1, 1)
    if inreg(3): wput(3)
    a(f"s_cmp_eq_u32 {sOwn}, 2\ns_cbranch_scc1 S_h1_ok")
    poll("S_h1", [vPoll], vFl, nap, 1)
    fload = f"buffer_load_dword {vFl[1]}, {vPoll}, {rF}, 0 offen sc1"
    def wl(i):
        if not inreg(i): issue_w(i)
    if ffirst: a(fload); issue_h(3)
    else: issue_h(3); a(fload)
    wl(3)
    def trig(lst, fn):
        done_ = set()
        for d, r, o in lst:
            if o and str(r) not in done_: a(f"v_fmamk_f32 {r}, {vStep}, {fhex(o)}, {vBase}"); done_.add(str(r))
        for d, r, o in lst: a(fn(d, r if o else vBase))
    cs_ = lambda d, r: f"v_cos_f32 {d[0]}, {r}\nv_sin_f32 {d[1]}, {r}"
    co_ = lambda d, r: f"v_cos_f32 {d}, {r}"
    def ggen(t):
        if t == 0:
            a(f"""
            v_and_b32 {vR16}, 15, {vL}
            v_lshrrev_b32 {vG}, 4, {vL}
            s_lshl_b32 {sT2}, {sJ}, 1
            s_lshl_b32 {sG0}, {sRb}, 2
            s_add_u32 {sG0}, {sG0}, {sT2}
            s_lshl_b32 {sT2}, {sM}, 6
            v_add_u32 {vT0}, {sT2}, {vR16}
            v_cvt_f32_u32 {vDf}, {vT0}
            s_sub_u32 {sT2}, 164, {sQ}
            s_cmp_lt_u32 {sQ}, 2
            s_cselect_b32 {sT2}, {sQ}, {sT2}
            v_lshrrev_b32 {vT0}, 5, {vL}
            v_lshl_add_u32 {vT0}, {vT0}, 3, {sT2}
            v_cvt_f32_u32 {vKf}, {vT0}
            v_and_b32 {vT1}, 1, {vG}
            v_cvt_f32_u32 {vT1}, {vT1}
            v_mul_f32 {vPh}, {fhex(0.25)}, {vT1}
            v_add_u32 {vT0}, {sQ}, {vG}
            v_cmp_eq_u32 {sMask}, 0, {vT0}
            v_add_u32 {vT0}, {vR16}, {vG}
            v_cvt_f32_u32 {vT0}, {vT0}
            v_mul_f32 {vT0}, {fhex(0.25)}, {vT0}
            v_cos_f32 {vT0}, {vT0}
            s_mov_b32 vcc_lo, -1
            s_mov_b32 vcc_hi, 0
            v_cvt_pk_bf16_f32 {vT0}, {vT0}, 0
            v_cndmask_b32 {G10[0]}, 0, {vT0}, vcc
            v_mov_b32 {G10[1]}, 0
            v_mov_b32 {G10[2]}, 0
            v_mov_b32 {G10[3]}, 0
            s_and_b32 {sPb}, {sQ}, 1
            s_mul_i32 {sPb}, {sPb}, 11
            s_lshr_b32 {sT2}, {sQ}, 1
            s_mul_i32 {sT2}, {sT2}, 5
            s_add_u32 {sPb}, {sPb}, {sT2}
            s_lshl_b32 {sPb}, {sPb}, 11
            v_lshrrev_b32 {vT0}, 1, {vR16}
            v_lshl_add_u32 {vT0}, {vT0}, 7, {sPb}
            v_lshrrev_b32 {vT1}, 2, {vR16}
            v_and_b32 {vT1}, 2, {vT1}
            v_xor_b32 {vT1}, {vT1}, {vG}
            v_lshl_add_u32 {vT0}, {vT1}, 4, {vT0}
            v_and_b32 {vT1}, 1, {vR16}
            v_lshl_add_u32 {vA}, {vT1}, 6, {vT0}
            s_cmp_eq_u32 {sQ}, 2
            s_mov_b32 vcc_lo, 0
            s_cselect_b32 vcc_hi, -1, 0
            """)
        a(f"""
        v_add_f32 {vStep}, {fhex(16.0*t)}, {vDf}
        v_mul_f32 {vT0}, {fhex(32/640)}, {vStep}
        v_mul_f32 {vStep}, {fhex(1/640)}, {vStep}
        v_cos_f32 {vT0}, {vT0}
        v_fma_f32 {vBase}, {vKf}, {vStep}, {vPh}
        v_add_f32 {vGk[0]}, {vT0}, {vT0}
        v_add_f32 {vGk[1]}, {vT0}, {vT0}
        """)
        trig([(TMP[8*w+j], TMP[8*w+j], 32*w + 2*(j % 4) + 16*(j // 4)) for w in range(2) for j in range(8)], co_)
        for w in range(5):
            cur = TMP[8*(w%2):8*(w%2)+8]
            if w >= 2:
                for j in range(0, 8, 2): a(f"v_pk_fma_f32 {cur[j:j+2]}, {TMP[8*(1-w%2)+j:8*(1-w%2)+j+2]}, {vGk}, {cur[j:j+2]} {NEG2}")
            for i in range(4):
                lo, up = cur[2*i], cur[2*i+1]
                if (w, i) == (0, 0): a(f"v_cndmask_b32 {vT0}, {lo}, 0.5, {sMask}"); lo = vT0
                if (w, i) == (4, 3): a(f"v_mul_f32 {vT0}, 0.5, {up}\nv_cndmask_b32 {vT0}, {up}, {vT0}, vcc"); up = vT0
                a(f"v_cvt_pk_bf16_f32 {G[20*t+4*w+i]}, {lo}, {up}")
    def pload(g):
        a(f"s_add_u32 {sT1}, {sG0}, {g}\ns_mul_i32 {sT1}, {sT1}, {P_GRP}\ns_add_u32 {sT0}, {sT1}, {sPb}\ns_cmp_lg_u32 {sQ}, 2\ns_cbranch_scc1 S_nox{g}")
        a(f"s_mov_b32 m0, {g*S2 + 20480}\ns_add_u32 {sT1}, {sT1}, 20480")
        for i in range(2): a(f"buffer_load_dwordx4 {vL16}, {r2}, {sT1} offen offset:{1024*i} sc1 lds")
        a(f"S_nox{g}:\ns_add_u32 m0, {sPb}, {g*S2}\ns_nop 0")
        for i in range(10):
            a(f"buffer_load_dwordx4 {vL16}, {r2}, {sT0} offen offset:{1024*(i%4)} sc1 lds")
            if i % 4 == 3: a(f"s_add_u32 m0, m0, 4096\ns_add_u32 {sT0}, {sT0}, 4096")
    for c in range(2, 9):
        a(f"s_waitcnt vmcnt({10 if c == 8 else 6 + nw(c + 1) + (c in (2, 4, 6))}) lgkmcnt(0)")
        if c == 7 and 'P' not in tdbg:
            a(f"v_cmp_ne_u32 vcc, {sTag}, {vFl[1]}\ns_cbranch_vccz S_pp_ok")
            poll("S_pp", [vPoll], vFl, nap)
        a("s_barrier")
        if c <= 7: ST(c, 1)
        if c >= 6: ST(c - 5, 2)
        if inreg(c + 2): wput(c + 2)
        if c in (2, 4):
            wl(c + 2)
            a(f"s_waitcnt vmcnt({nw(c + 1) + nw(c + 2) + (6 if ffirst else 0)})"); stage_chk(vFl[1], c // 2); a(f"s_cbranch_vccz S_hs{c}_ok")
            poll(f"S_hs{c}", [vPoll], vFl, nap, c // 2)
            issue_h(c + 2)
        elif c in (3, 5):
            if c == 5: a(f"s_mul_i32 {sT0}, {sQ}, 22\ns_add_u32 {sT0}, {sT0}, {FP}\nv_min_u32 {vT0}, 21, {vL}\nv_add_lshl_u32 {vPoll}, {vT0}, {sT0}, 7")
            if ffirst: a(fload); issue_h(c + 2)
            else: issue_h(c + 2); a(fload)
            wl(c + 2)
        elif c == 6: issue_h(8); wl(8)
        else: pload(c - 7)
    a(f"v_add_u32 {vPoll}, {sPb}, {vL16}\ns_setprio {t3prio}")
    for rd in range(2):
        a(f"s_waitcnt vmcnt({10 if rd == 0 else 0})")
        ST(5 + rd); ST(4 + rd, 2)
        for k in range(6):
            for rho in range(2): a(f"ds_read_b128 {buf[8*k+4*rho:8*k+4*rho+4]}, {vA} offset:{S2*rd + 2048*k + 1024*rho}")
        for k in range(6):
            if k == 5: a(f"s_cmp_lg_u32 {sQ}, 2\ns_cbranch_scc1 S_noy{rd}")
            a(f"s_waitcnt lgkmcnt({10 - 2*k})")
            for t in range(4):
                for rho in range(2):
                    ac = ac3[8*t+4*rho:8*t+4*rho+4]
                    a(f"{MF16} {ac}, {buf[8*k+4*rho:8*k+4*rho+4]}, {G10 if k == 5 else G[20*t+4*k:20*t+4*k+4]}, {ac if k else 0}")
        a(f"S_noy{rd}:\nv_nop\ns_nop 7\ns_waitcnt lgkmcnt(0)")
        for t in range(4):
            for i in range(4): a(f"v_cvt_pk_bf16_f32 {TMP[4*t+i]}, {ac3[8*t+2*i]}, {ac3[8*t+2*i+1]}")
            a(f"ds_write_b128 {vPoll}, {TMP[4*t:4*t+4]} offset:{S2*rd + 1024*t}")
    a("s_waitcnt lgkmcnt(0)")
    ST(7); ST(6, 2)
    a("s_barrier")
    done()
    for t in range(4):
        a(f"S_tab{t}:"); ggen(t); a(f"s_setpc_b64 {sRet}")
    def wtouch():
        a.srd(r1, pWr[0], pWr[1], W_BYTES)
        a.srd(r2, pWi[0], pWi[1], W_BYTES)
        a(f"""
        s_and_b32 {sT0}, s2, 7
        s_lshl_b32 {sT0}, {sT0}, 1
        s_lshr_b32 {sT1}, {sQ}, 1
        s_add_u32 {sT0}, {sT0}, {sT1}
        s_sub_u32 {sT1}, 32, {sT0}
        s_cmp_eq_u32 {sT0}, 0
        s_cselect_b32 {sT1}, 16, {sT1}
        s_bitcmp1_b32 {sQ}, 0
        s_cselect_b32 {sT0}, {sT1}, {sT0}
        s_lshr_b32 {sT1}, s2, 3
        s_sub_u32 {sT1}, {sT1}, 20
        s_mul_i32 {sT1}, {sT1}, {6*32}
        s_add_u32 {sT0}, {sT0}, {sT1}
        s_mul_i32 {sT0}, {sT0}, 642
        v_and_b32 {vT0}, 7, {vL}
        v_min_u32 {vT0}, 5, {vT0}
        v_lshl_add_u32 {vT0}, {vT0}, 7, {sT0}
        v_lshrrev_b32 {vT1}, 3, {vL}
        v_min_u32 {vT1}, 5, {vT1}
        v_mul_u32_u24 {vT1}, {32*642}, {vT1}
        v_add_u32 {vT0}, {vT0}, {vT1}
        buffer_load_ushort {vPf}, {vT0}, {r1}, 0 offen
        buffer_load_ushort {vPf}, {vT0}, {r2}, 0 offen
        """)
    def wstage(k):
        tm, sg = k >> 1, k & 1
        a(f"""
        s_lshr_b32 {sT2}, s2, 3
        s_sub_u32 {sT2}, {sT2}, 20
        s_min_u32 {sT2}, {sT2}, 10
        s_cmp_gt_u32 {sT2}, 5
        s_cselect_b32 {sT1}, 62, 0
        s_lshl_b32 {sT2}, {sT2}, 6
        s_sub_u32 {sT2}, {sT2}, {sT1}
        s_lshl_b32 {sT0}, {sQ}, 12
        s_add_u32 m0, {sT0}, {WA_OFF + 16384*tm + 2048*sg}
        v_lshrrev_b32 {vT1}, 2, {vL}
        s_and_b32 {sT0}, s2, 7
        s_lshl_b32 {sT0}, {sT0}, 1
        s_add_u32 {sT0}, {sT0}, {tm}
        """)
        if sg: a(f"s_sub_u32 {sT1}, 0, {sT0}\ns_cmp_eq_u32 {sT0}, 0\ns_cselect_b32 {sT0}, 16, {sT1}")
        a(f"""
        s_lshl_b32 {sT1}, {sQ}, 9
        s_add_u32 {sT0}, {sT0}, {sT1}
        v_lshl_add_u32 {vT0}, {vT1}, 5, {sT0}
        v_and_b32 {vT0}, 2047, {vT0}
        v_mul_u32_u24 {vT0}, 642, {vT0}
        v_and_b32 {vT2}, 48, {vL16}
        v_add_u32 {vT0}, {vT0}, {vT2}
        buffer_load_dwordx4 {vT0}, {r1}, {sT2} offen lds
        s_add_u32 m0, m0, 1024
        s_nop 0
        buffer_load_dwordx4 {vT0}, {r2}, {sT2} offen lds
        """)
    a("S_t1load:")
    for c in range(3): xdma(16384*c); adv(False)
    common_after_kernarg()
    ex = {c: 0 for c in range(-3, 10)}
    ex[wtc] += 2; ex[w2c] += 1
    for c in range(6, 10): ex[c] += 2
    for c in range(10):
        n = 4*min(2, 9 - c) + sum(ex[k] for k in range(min(c - 3, 6), c)) + (1 if c in (2, 3) else 0)
        a(f"s_waitcnt vmcnt({n}){' lgkmcnt(0)' if c else ''}\ns_barrier")
        if c == 1: tagready(); started()
        if c < 7: xdma(16384*((c + 3) % 4)); adv(False)
        if c == w2c:
            a.srd(r1, pW2[0], pW2[1], W2_BYTES)
            a(f"""
            s_mul_i32 {sT0}, {sJ}, 3
            s_add_u32 {sT0}, {sT0}, {sM}
            s_sub_u32 {sT0}, {sT0}, 5
            s_lshl_b32 {sT0}, {sT0}, 4
            s_add_u32 {sT0}, {sT0}, {sRb}
            s_lshl_b32 {sT0}, {sT0}, 2
            s_add_u32 {sT0}, {sT0}, {sQ}
            s_mul_i32 {sT0}, {sT0}, {54*128}
            v_min_u32 {vT0}, 53, {vL}
            v_lshlrev_b32 {vT0}, 7, {vT0}
            buffer_load_dword {vPf}, {vT0}, {r1}, {sT0} offen
            """)
        if c == wtc: wtouch()
        if c >= 6: wstage(c - 6)
    a("s_setprio 0\ns_branch S_t2")
    V.release(mark); S.release(smark)
    cw = V(40); ca = V(8); sU = S()
    a(f"""
    S_colsum:
    s_lshl_b32 {sU}, {sRb}, 1
    s_add_u32 {sU}, {sU}, {sJ}
    s_lshl_b32 {sT0}, {sU}, 1
    s_lshr_b32 {sT1}, {sW}, 2
    s_add_u32 {sT0}, {sT0}, {sT1}
    s_lshl_b32 {sT1}, {sQ}, 9
    s_add_u32 {sT0}, {sT0}, {sT1}
    s_mul_i32 {sT0}, {sT0}, 1280
    v_lshrrev_b32 {vT2}, 3, {vL}
    v_mul_u32_u24 {vT0}, {64*1280}, {vT2}
    v_and_b32 {vT1}, 0x70, {vL16}
    v_add_u32 {vT0}, {vT0}, {vT1}
    v_mov_b32 {ca[4]}, 0x3f803f80
    """)
    for k in range(4): a(f"v_mov_b32 {ca[k]}, 0")
    a("s_waitcnt lgkmcnt(0)")
    a.srd(r0, pX[0], pX[1], X_BYTES)
    for i in range(10): a(f"buffer_load_dwordx4 {cw[4*i:4*i+4]}, {vT0}, {r0}, {sT0} offen offset:{128*i}")
    common_after_kernarg()
    a.srd_off(r1, pWS, WS_ST, ST_BYTES)
    for i in range(10):
        a(f"s_waitcnt vmcnt({9 - i})")
        for k in range(4): a(f"v_dot2c_f32_bf16 {ca[k%2]}, {cw[4*i+k]}, {ca[4]}\nv_dot2c_f32_bf16 {ca[2+k%2]}, {cw[4*i+k]}, {cw[4*i+k]}")
    a(f"s_nop 2\nv_add_f32 {ca[0]}, {ca[0]}, {ca[1]}\nv_add_f32 {ca[2]}, {ca[2]}, {ca[3]}")
    for dpp in ("quad_perm:[1,0,3,2]", "quad_perm:[2,3,0,1]", "row_half_mirror"):
        a(f"s_nop 1\nv_add_f32_dpp {ca[0]}, {ca[0]}, {ca[0]} {dpp} row_mask:0xf bank_mask:0xf\nv_add_f32_dpp {ca[2]}, {ca[2]}, {ca[2]} {dpp} row_mask:0xf bank_mask:0xf")
    row_stats_finish(a, ca[0], ca[2], vT0, ca[1], ca[3])
    a(f"""
    v_lshrrev_b32 {ca[1]}, 16, {ca[1]}
    v_or_b32 {ca[1]}, {ca[1]}, {ca[3]}
    s_lshl_b32 {sT0}, {sW}, 5
    v_lshl_add_u32 {vT0}, {vT2}, 2, {sT0}
    ds_write_b32 {vT0}, {ca[1]}
    s_waitcnt lgkmcnt(0)
    s_barrier
    s_cmp_lg_u32 {sW}, 0
    s_cbranch_scc1 S_stb
    v_lshlrev_b32 {vT0}, 2, {vL}
    ds_read_b32 {ca[0]}, {vT0}
    s_add_u32 {sT1}, {sTag}, {TAG_STEP}
    v_mov_b32 {ca[1]}, {sT1}
    v_lshlrev_b32 {vT0}, 3, {vL}
    s_lshl_b32 {sT0}, {sU}, 9
    s_waitcnt lgkmcnt(0)
    buffer_store_dwordx2 {ca[0:2]}, {vT0}, {r1}, {sT0} offen sc1
    S_stb:
    s_barrier
    """)
    ST(3)
    a(f"""
    s_lshl_b32 {sU}, {sJ}, 4
    s_add_u32 {sU}, {sU}, {sRb}
    v_lshrrev_b32 {vT0}, 3, {vL}
    v_mul_u32_u24 {vT0}, 3456, {vT0}
    v_and_b32 {vT1}, 0x70, {vL16}
    v_add_u32 {vT0}, {vT0}, {vT1}
    s_mul_i32 {sT0}, {sW}, {80*3456}
    s_lshl_b32 {sT1}, {sU}, 7
    s_add_u32 {sT0}, {sT0}, {sT1}
    """)
    a.srd(r0, pW1[0], pW1[1], W1_BYTES)
    a.srd(r1, pB1[0], pB1[1], 1728*2)
    a.srd_off(r2, pWS, WS_CS, CS_BYTES)
    a(f"s_cmp_ge_u32 {sU}, 27\ns_cbranch_scc1 S_nocs")
    for i in range(10): a(f"buffer_load_dwordx4 {cw[4*i:4*i+4]}, {vT0}, {r0}, {sT0} offen\ns_add_u32 {sT0}, {sT0}, {8*3456}")
    a(f"v_lshlrev_b32 {vT2}, 1, {vL}\nbuffer_load_ushort {vPf}, {vT2}, {r1}, {sT1} offen")
    for i in range(10):
        a(f"s_waitcnt vmcnt({10 - i})")
        for k in range(4):
            if i == 0: a(f"v_lshlrev_b32 {ca[2*k]}, 16, {cw[k]}\nv_and_b32 {ca[2*k+1]}, 0xffff0000, {cw[k]}")
            else: a(f"v_lshlrev_b32 {vT0}, 16, {cw[4*i+k]}\nv_and_b32 {vT1}, 0xffff0000, {cw[4*i+k]}\nv_add_f32 {ca[2*k]}, {ca[2*k]}, {vT0}\nv_add_f32 {ca[2*k+1]}, {ca[2*k+1]}, {vT1}")
    a(f"""
    s_lshl_b32 {sT0}, {sW}, 11
    v_lshl_add_u32 {vT0}, {vL}, 5, {sT0}
    ds_write_b128 {vT0}, {ca[0:4]}
    ds_write_b128 {vT0}, {ca[4:8]} offset:16
    s_waitcnt lgkmcnt(0)
    s_barrier
    s_cmp_lg_u32 {sW}, 0
    s_cbranch_scc1 S_csb
    v_lshlrev_b32 {vT0}, 2, {vL}
    """)
    for b in range(4):
        for i in range(8): a(f"ds_read2st64_b32 {cw[2*i:2*i+2]}, {vT0} offset0:{16*b + 2*i} offset1:{16*b + 2*i + 1}")
        a("s_waitcnt lgkmcnt(0)")
        for i in range(16): a(f"v_add_f32 {ca[i%2]}, {cw[i]}, {ca[i%2]}" if b or i > 1 else f"v_mov_b32 {ca[i]}, {cw[i]}")
    a(f"""
    v_add_f32 {ca[0]}, {ca[0]}, {ca[1]}
    v_cvt_pk_bf16_f32 {vT0}, -{ca[0]}, -{ca[0]}
    v_and_b32 {vT1}, 0xffff0000, {vT0}
    v_sub_f32 {vT1}, -{ca[0]}, {vT1}
    v_cvt_pk_bf16_f32 {ca[4]}, -{ca[0]}, {vT1}
    v_mov_b32 {ca[6]}, 0
    s_add_u32 {sT1}, {sTag}, {TAG_STEP}
    v_mov_b32 {ca[7]}, {sT1}
    s_lshl_b32 {sT0}, {sU}, 10
    s_waitcnt vmcnt(0)
    v_mov_b32 {ca[5]}, {vPf}
    buffer_store_dwordx4 {ca[4:8]}, {vL16}, {r2}, {sT0} offen sc1
    S_csb:
    S_nocs:
    s_waitcnt vmcnt(0) lgkmcnt(0)
    s_barrier
    """)
    tagready(); started()
    a(f"s_lshr_b32 {sT0}, {sW}, 2\ns_and_b32 {sT0}, {sT0}, {sJ}\ns_cbranch_scc0 S_nows")
    wtouch()
    for k in range(4): wstage(k)
    a("S_nows:")
    ST(1)
    def w2first(nw):
        a.srd(r0, pW2[0], pW2[1], W2_BYTES)
        a(f"""
        s_and_b32 {sT0}, {sRb}, 3
        s_mul_i32 {sT0}, {sT0}, {nw}
        s_add_u32 {sT0}, {sT0}, {sW}
        s_mul_i32 {sT0}, {sT0}, {55*128}
        s_mul_i32 {sT1}, {sJ}, {864*1280}
        s_add_u32 {sT0}, {sT0}, {sT1}
        v_min_u32 {vT0}, 54, {vL}
        v_lshlrev_b32 {vT0}, 7, {vT0}
        """)
        for i in range(16 // nw): a(f"buffer_load_dword {vPf}, {vT0}, {r0}, {sT0} offen\ns_add_u32 {sT0}, {sT0}, {4*nw*55*128}")
    w2first(8)
    a(f"""
    s_mov_b32 {sCk}, {BIG}
    s_cmp_eq_u32 {sJ}, 1
    s_cbranch_scc1 S_t2
    s_mov_b32 {sOwn}, 0
    s_cmp_lt_u32 {sW}, 4
    s_cbranch_scc1 S_csc
    """)
    for k in range(4): a(f"s_call_b64 {sRet}, S_tab{k}")
    a(f"""
    s_branch S_load2
    S_csc:
    s_mov_b32 {sRole}, 1
    s_branch S_comp1b
    """)
    V.release(mark); S.release(smark)
    vR16 = V(); vG = V(); vHa = V(); vWb = V(4); vOo = V(); vXl = V(); vHw = V()
    sNu, sSg, sZo, sZi, sOo, sBo, sSo, sFl = [S() for _ in range(8)]; sRp, sHf = sNu, sSg; sOm = S(2)
    m2 = V.mark()
    vXa = V(2); vWa = V(6)
    acc = [[V(4) for t in range(6)] for r in range(4)]
    bX = [V(16), V(16)]; bW = [V(24), V(24)]
    st = V(8); cs = V(24); augX = V(8); kk = V(8); vSo = V()
    a(f"""
    S_comp1:
    s_cmp_ge_u32 {sM}, 5
    s_cbranch_scc1 S_t1
    s_mov_b32 {sRole}, 0
    S_comp1b:
    s_and_b32 {sRp}, {sW}, 1
    s_lshr_b32 {sHf}, {sW}, 1
    v_and_b32 {vR16}, 15, {vL}
    v_lshrrev_b32 {vG}, 4, {vL}
    s_mul_i32 {sT0}, {sNu}, 6144
    s_add_u32 {sT0}, {sT0}, 24576
    v_add_u32 {vHa}, {sT0}, {vL16}
    v_lshrrev_b32 {vT0}, 2, {vL}                ; row 4g + r16/4
    v_lshlrev_b32 {vT0}, 7, {vT0}
    v_and_b32 {vT1}, 3, {vL}
    v_lshl_add_u32 {vT0}, {vT1}, 3, {vT0}
    v_bfe_u32 {vT1}, {vL}, 3, 2
    v_lshl_add_u32 {vT0}, {vT1}, 5, {vT0}
    s_mul_i32 {sT0}, {sSg}, 12288
    v_add_u32 {vWb[0]}, {sT0}, {vT0}
    v_xor_b32 {vWb[1]}, 32, {vWb[0]}
    v_xor_b32 {vWb[2]}, 64, {vWb[0]}
    v_xor_b32 {vWb[3]}, 96, {vWb[0]}
    s_lshl_b32 {sZo}, s2, 2
    s_add_u32 {sZo}, {sZo}, {sW}
    s_xor_b32 {sZi}, {sZo}, 4
    s_mul_i32 {sZo}, {sZo}, {ZW}
    s_mul_i32 {sZi}, {sZi}, {ZW}
    s_lshl_b32 {sT0}, {sRb}, 2
    s_lshl_b32 {sT1}, {sJ}, 1
    s_add_u32 {sT0}, {sT0}, {sT1}
    s_add_u32 {sT0}, {sT0}, {sNu}
    s_mul_i32 {sOo}, {sT0}, 1280
    s_lshl_b32 {sBo}, {sM}, 7
    s_mul_i32 {sT0}, {sSg}, 640
    s_add_u32 {sBo}, {sBo}, {sT0}
    s_add_u32 {sOo}, {sOo}, {sBo}
    v_lshrrev_b32 {vT0}, 3, {vL}
    v_and_b32 {vT1}, 7, {vL}
    v_xor_b32 {vT2}, {vT1}, {vT0}
    v_mul_u32_u24 {vT0}, {64*1280}, {vT0}
    v_lshl_add_u32 {vOo}, {vT2}, 4, {vT0}
    v_lshrrev_b32 {vT0}, 1, {vG}
    v_xor_b32 {vT0}, {vT0}, {vT1}
    v_lshlrev_b32 {vT0}, 4, {vT0}
    v_lshl_add_u32 {vT0}, {vR16}, 7, {vT0}
    v_and_b32 {vT1}, 1, {vG}
    v_lshl_add_u32 {vT0}, {vT1}, 3, {vT0}
    s_lshl_b32 {sT0}, {sW}, 12
    s_add_u32 {sT0}, {sT0}, {XL_OFF}
    v_add_u32 {vXl}, {sT0}, {vT0}
    s_mov_b32 {sFl}, {BIG}
    s_cmp_eq_u32 {sRole}, 1
    s_cbranch_scc1 S_comp2a
    s_sub_u32 {sT0}, {sM}, {sJ}
    s_subb_u32 {sT0}, {sHf}, 0
    s_cselect_b64 {sOm}, 0, -1
    s_max_i32 {sT0}, {sT0}, 0
    s_mul_i32 {sT0}, {sT0}, {S2}
    s_xor_b32 {sT1}, {sRp}, {sJ}
    s_mul_i32 {sT1}, {sT1}, 12288
    s_add_u32 {sT0}, {sT0}, {sT1}
    s_add_u32 {sT0}, {sT0}, 24576
    v_add_u32 {vHw}, {sT0}, {vL16}
    v_lshrrev_b32 {vT0}, 1, {vR16}
    v_xor_b32 {vT0}, {vT0}, {vG}
    v_lshlrev_b32 {vT0}, 4, {vT0}
    v_lshl_add_u32 {vT0}, {vR16}, 7, {vT0}
    s_lshl_b32 {sT0}, {sRp}, 13
    v_add_u32 {vXa[0]}, {sT0}, {vT0}
    v_xor_b32 {vXa[1]}, 64, {vXa[0]}
    v_lshrrev_b32 {vT0}, 2, {vR16}
    v_lshl_add_u32 {vT0}, {vG}, 3, {vT0}
    v_lshlrev_b32 {vT0}, 7, {vT0}
    v_and_b32 {vT1}, 3, {vL}
    v_lshl_add_u32 {vT0}, {vT1}, 3, {vT0}
    v_bfe_u32 {vT1}, {vL}, 3, 2
    v_lshl_add_u32 {vT0}, {vT1}, 5, {vT0}
    s_mul_i32 {sT1}, {sHf}, 6
    """)
    for t in range(6):
        a(f"""
        s_add_u32 {sT0}, {sT1}, {t}
        s_lshr_b32 {sT2}, {sT0}, 2
        s_lshl_b32 {sT2}, {sT2}, 13
        s_and_b32 {sT0}, {sT0}, 3
        s_lshl_b32 {sT0}, {sT0}, 5
        s_add_u32 {sT0}, {sT0}, {sT2}
        s_add_u32 {sT0}, {sT0}, 16384
        v_xor_b32 {vWa[t]}, {sT0}, {vT0}
        """)
    a(f"""
    s_lshl_b32 {sT0}, {sJ}, 2
    s_add_u32 {sT0}, {sT0}, {sM}
    s_lshl_b32 {sT0}, {sT0}, 1
    s_add_u32 {sT0}, {sT0}, {sHf}
    s_lshl_b32 {sFl}, {sT0}, 1
    s_add_u32 {sFl}, {sFl}, {sRp}
    s_mul_i32 {sT1}, {sRb}, 36
    s_add_u32 {sFl}, {sFl}, {sT1}
    s_add_u32 {sFl}, {sFl}, {FH}
    s_lshl_b32 {sFl}, {sFl}, 7
    s_mul_i32 {sT2}, {sT0}, {96*16}
    v_lshl_add_u32 {vSo}, {vR16}, 4, {sT2}
    s_lshl_b32 {sT1}, {sRb}, 1
    s_add_u32 {sT1}, {sT1}, {sRp}
    s_mul_i32 {sSo}, {sT1}, 108
    s_mul_i32 {sT0}, {sT0}, 3
    s_add_u32 {sSo}, {sSo}, {sT0}
    s_lshl_b32 {sSo}, {sSo}, 11
    s_lshl_b32 {sT1}, {sT1}, 9
    v_lshl_add_u32 {vT2}, {vR16}, 3, {sT1}
    v_mov_b32 {augX[2]}, 0
    v_mov_b32 {augX[3]}, 0
    v_mov_b32 {augX[6]}, 0
    v_mov_b32 {augX[7]}, 0
    s_waitcnt lgkmcnt(0)
    """)
    common_after_kernarg()
    a.srd_off(r0, pWS, WS_H, H_BYTES)
    a.srd_off(r1, pWS, WS_ST, ST_BYTES)
    a.srd_off(r2, pWS, WS_CS, CS_BYTES)
    def sload(): return [f"buffer_load_dwordx2 {st[2*r:2*r+2]}, {vT2}, {r1}, 0 offen offset:{128*r} sc1" for r in range(4)] + \
                        [f"buffer_load_dwordx4 {cs[4*t:4*t+4]}, {vSo}, {r2}, 0 offen offset:{256*t} sc1" for t in range(6)]
    def rd1(b, u): return [f"ds_read_b128 {bX[b][4*r:4*r+4]}, {vXa[u]} offset:{2048*r}" for r in range(4)] + \
                          [f"ds_read_b64_tr_b16 {bW[b][4*t+2*e:4*t+2*e+2]}, {vWa[t]} offset:{4096*u + 512*e}" for t in range(6) for e in range(2)]
    def mm1(b, z=False): return [f"{MF16} {acc[r][t]}, {bW[b][4*t:4*t+4]}, {bX[b][4*r:4*r+4]}, {0 if z else acc[r][t]}" for t in range(6) for r in range(4)]
    ST(1)
    c0 = -2 * math.sqrt(2 / math.pi) * math.log2(math.e); c1 = c0 * 0.044715
    def chk():
        o = [f"v_xor_b32 {vT0}, {vTag}, {st[1]}"]
        tg = [st[3], st[5], st[7]] + [cs[4*t+3] for t in range(6)]
        for i in range(0, 8, 2): o += [f"v_xor_b32 {vT1}, {vTag}, {tg[i]}", f"v_xor_b32 {kk[0]}, {vTag}, {tg[i+1]}", f"v_or3_b32 {vT0}, {vT0}, {vT1}, {kk[0]}"]
        return o + [f"v_xor_b32 {vT1}, {vTag}, {tg[8]}", f"v_or_b32 {vT0}, {vT0}, {vT1}", f"v_cmp_ne_u32 vcc, 0, {vT0}"]
    prep = [f"v_mov_b32 {cs[4*t+3]}, 0" for t in range(6)]
    for r in range(4):
        prep += [f"v_perm_b32 {vT0}, {st[2*r]}, {st[2*r]}, {sT0}", f"v_lshrrev_b32 {vT1}, 16, {st[2*r]}", f"v_cndmask_b32 {kk[2*r]}, 0, {vT0}, {sMask}", f"v_cndmask_b32 {kk[2*r+1]}, 0, {vT1}, {sMask}",
                 f"v_and_b32 {st[2*r]}, 0xffff0000, {st[2*r]}", f"v_rcp_f32 {st[2*r+1]}, {st[2*r]}"]
    a(f"v_cmp_eq_u32 {sMask}, 0, {vG}\ns_mov_b32 {sT0}, 0x01000100\ns_mov_b32 {sC}, 0")
    for n in range(20):
        c, u = divmod(n, 2)
        a(".p2align 3\ns_waitcnt lgkmcnt(0)\n" + ("s_barrier" if u == 0 else "s_nop 0"))
        if n == 0: ST(2)
        if n == 1: tagready()
        if dsl[0] and u == 0 and dsl[1] <= c < dsl[2]: a(f"s_sleep {dsl[0]}\ns_nop 0")
        up = [f"v_add_u32 {v}, {(S1 if c % 3 < 2 else -2*S1) & 0xffffffff}, {v}" for v in [vXa[0], vXa[1]] + [vWa[t] for t in range(6)]] if u == 1 and c < 9 else []
        ex = (sload(), [0]*14 + [1]*10) if n == sn else (["s_waitcnt vmcnt(0)"] + chk(), [0]*15 + [1] + [2]*8) if n == 18 else (prep, [1]*18 + [2]*6) if n == 19 else ([], [0]*24)
        for l in (weave(mm1(1 - u, n == 1), (rd1(u, u), [1]*16 + [0]*8), (up, [0]*16 + [1]*8), ex) if (u or c > npipe) else rd1(0, 0)): a(l)
        if u == 1 and c < npipe:
            a("s_waitcnt lgkmcnt(0)\ns_nop 0")
            for l in mm1(1): a(l)
        if n == 18: a("s_cbranch_vccnz S_sretry\nS_sok:")
    a("s_waitcnt lgkmcnt(0)\ns_barrier")
    ST(3)
    au = []; fl = []; cnt = []
    for r in range(4):
        au += [f"{MF16} {acc[r][t]}, {cs[4*t:4*t+4]}, {augX[4*(r%2):4*(r%2)+4]}, {acc[r][t]}" for t in range(6)]
        if r < 3: fl += [f"v_mov_b32 {augX[4*((r+1)%2)+k]}, {kk[2*r+2+k]}" for k in range(2)]
        cnt += [1, 1, 0, 0, 0, 0]
    a(f"v_mov_b32 {augX[0]}, {kk[0]}\nv_mov_b32 {augX[1]}, {kk[1]}\ns_nop 1")
    for l in weave(au, (fl, cnt)): a(l)
    fl = []
    for r in range(4):
        fl += [f"v_mul_f32 {kk[2*r]}, {fhex(c0)}, {st[2*r+1]}", f"v_mul_f32 {vT1}, {st[2*r+1]}, {st[2*r+1]}", f"v_mul_f32 {vT1}, {vT1}, {st[2*r+1]}", f"v_mul_f32 {kk[2*r+1]}, {fhex(c1)}, {vT1}"]
    last = [f"{MF16} {acc[r][t]}, {bW[1][4*t:4*t+4]}, {bX[1][4*r:4*r+4]}, {acc[r][t]}" for t in range(6) for r in range(4)]
    for l in weave(last, (fl, [1]*24)): a(l)
    ST(4)
    retry = [f"S_sretry:\ns_add_u32 {sC}, {sC}, 1\ns_cmp_ge_u32 {sC}, {SPIN_MAX}\ns_cbranch_scc1 S_sok\ns_sleep 2"] + sload() + ["s_waitcnt vmcnt(0)"] + chk() + ["s_cbranch_vccnz S_sretry\ns_branch S_sok"]
    gq = [bW[0][2*i:2*i+2] for i in range(12)] + [bX[0][2*i:2*i+2] for i in range(4)]
    def sflag(n=0): a(f"s_waitcnt vmcnt({n})\n{'s_mov_b32 exec_hi, 0' if fullf else 's_mov_b64 exec, 1'}\nbuffer_store_dword {vT1}, {vT0}, {rF}, 0 offen sc1\ns_mov_b64 exec, -1\nv_add_u32 {vT1}, 1, {vT1}")
    BR = cs[16:24]
    def bload():
        a.srd(r1, pB2[0], pB2[1], 1280)
        a(f"v_lshlrev_b32 {vT2}, 3, {vG}")
        for t in range(4): a(f"buffer_load_dwordx2 {BR[2*t:2*t+2]}, {vT2}, {r1}, {sBo} offen offset:{32*t}")
    bload()
    a(f"v_lshl_add_u32 {vT0}, {vL}, 2, {sFl}\nv_mov_b32 {vT1}, {vTag}\ns_add_u32 {sT0}, {sSo}, {54*2048}\n.p2align 3")
    for p in range(3):
        P = [acc[i//4][2*p + (i%4)//2][2*(i%2):2*(i%2)+2] for i in range(16)]
        for i in range(16): a(f"v_pk_mul_f32 {gq[i]}, {P[i]}, {P[i]}")
        for i in range(16): a(f"v_pk_fma_f32 {gq[i]}, {gq[i]}, {kk[2*(i//4):2*(i//4)+2]}, {kk[2*(i//4):2*(i//4)+2]} op_sel:[0,1,0] op_sel_hi:[1,1,0]")
        for i in range(16): a(f"v_pk_mul_f32 {gq[i]}, {gq[i]}, {P[i]}")
        for i in range(16): a(f"v_exp_f32 {gq[i][0]}, {gq[i][0]}\nv_exp_f32 {gq[i][1]}, {gq[i][1]}")
        for i in range(16): a(f"v_pk_fma_f32 {gq[i]}, {gq[i]}, {st[2*(i//4):2*(i//4)+2]}, {st[2*(i//4):2*(i//4)+2]} op_sel_hi:[1,0,0]")
        if p and fpos == 0: sflag()
        for i in range(16): a(f"v_rcp_f32 {gq[i][0]}, {gq[i][0]}\nv_rcp_f32 {gq[i][1]}, {gq[i][1]}")
        if p and fpos == 1: sflag()
        for i in range(16): a(f"v_pk_mul_f32 {gq[i]}, {gq[i]}, {P[i]}")
        for i in range(16): a(f"v_cvt_pk_bf16_f32 {acc[i//4][2*p][i%4]}, {gq[i][0]}, {gq[i][1]}")
        for r in range(4): a(f"buffer_store_dwordx4 {acc[r][2*p]}, {vL16}, {r0}, {sT0 if r // 2 else sSo} offen offset:{1024*(r%2)} sc1")
        if p and fpos == 2: sflag(4)
        a(f"s_mov_b64 exec, {sOm}\ns_nop 0")
        for r in range(4): a(f"ds_write_b128 {vHw}, {acc[r][2*p]} offset:{6144*(r//2) + 2048*p + 1024*(r%2)}")
        a(f"s_mov_b64 exec, -1\ns_nop 0\ns_add_u32 {sSo}, {sSo}, 2048\ns_add_u32 {sT0}, {sT0}, 2048")
    if any(ch in tdbg for ch in 'abc'):
        i0_ = max(i for i, l in enumerate(a.lines) if l.strip() == ".p2align 3")
        keep_ = [l for l in a.lines[i0_:] if not (('a' in tdbg and 'vmcnt' in l) or ('b' in tdbg and 'ds_write' in l) or ('c' in tdbg and 'buffer_store_dwordx4' in l))]
        a.lines[i0_:] = keep_
    ST(5)
    V.release(m2)
    vL8 = V(); vStep = V(); vBase = V(); KEEP = V(32); SEND = V(32); ZS = V(22); ZR = V(22); U = V(8); Rf = V(16); bH = [V(16), V(16)]; bW = [V(16), V(16)]; XR = bW[1]
    assert V.p <= BR.base
    a("S_comp2:")
    a.srd_off(r0, pWS, WS_Z, Z_BYTES)
    a.srd(r2, pOut[0], pOut[1], X_BYTES)
    A2 = lambda r, t: (SEND if r >= 2 else KEEP)[16*(r%2)+4*t:16*(r%2)+4*t+4]
    def rd2(b, ks): return [f"ds_read_b128 {bH[b][4*r:4*r+4]}, {vHa} offset:{12288*(r//2) + 2048*ks + 1024*(r%2)}" for r in range(4)] + \
                           [f"ds_read_b64_tr_b16 {bW[b][4*t+2*e:4*t+2*e+2]}, {vWb[t]} offset:{4096*ks + 2048*e}" for t in range(4) for e in range(2)]
    def mm2(b, z=False, rs=(0, 1, 2, 3)): return [f"{MF16} {A2(r, t)}, {bW[b][4*t:4*t+4]}, {bH[b][4*r:4*r+4]}, {0 if z and r >= 2 else A2(r, t)}" for t in range(4) for r in rs]
    unp = lambda src, d=U: [f"v_lshlrev_b32 {d[0]}, 16, {src[0]}", f"v_and_b32 {d[1]}, 0xffff0000, {src[0]}", f"v_lshlrev_b32 {d[2]}, 16, {src[1]}", f"v_and_b32 {d[3]}, 0xffff0000, {src[1]}"]
    padd = lambda d: [f"v_pk_add_f32 {d[0:2]}, {d[0:2]}, {U[0:2]}", f"v_pk_add_f32 {d[2:4]}, {d[2:4]}, {U[2:4]}"]
    def rtab():
        a(f"""
        s_lshl_b32 {sT0}, {sRb}, 2
        s_lshl_b32 {sT1}, {sJ}, 1
        s_add_u32 {sT0}, {sT0}, {sT1}
        s_add_u32 {sT0}, {sT0}, {sNu}
        s_mul_i32 {sT1}, {sSg}, 0x80008000
        v_lshlrev_b32 {vT2}, 31, {vR16}
        v_or_b32 {vT2}, 1.0, {vT2}
        v_lshlrev_b32 {vT1}, 1, {vG}
        v_cvt_f32_u32 {vT1}, {vT1}
        v_cmp_eq_u32 vcc, 0, {vG}
        """)
        for nu in range(2):
            a(f"v_lshl_add_u32 {vT0}, {vR16}, 6, {sT0}\nv_cvt_f32_u32 {vStep}, {vT0}\nv_mul_f32 {vStep}, {fhex(-1/2048)}, {vStep}\nv_mul_f32 {vBase}, {vT1}, {vStep}\ns_add_u32 {sT0}, {sT0}, 1024")
            trig([(U[2*i:2*i+2], U[2*i+1], 8*(i // 2) + (i % 2)) for i in range(4)], cs_)
            a(f"v_cndmask_b32 {U[1]}, {U[1]}, {vT2}, vcc")
            for i in range(8): a(f"v_mul_f32 {U[i]}, {fhex(2.0 / (2048 * 640))}, {U[i]}")
            for i in range(4): a(f"v_cvt_pk_bf16_f32 {Rf[4*nu+i]}, {U[2*i]}, {U[2*i+1]}")
            for i in range(4): a(f"v_xor_b32 {Rf[8+4*nu+i]}, {sT1}, {Rf[4*nu+i]}")
    for n in range(27):
        c, ks = divmod(n, 3)
        a(".p2align 3\ns_waitcnt lgkmcnt(0)\n" + ("s_barrier" if ks == 0 else "s_nop 0"))
        if n == 0: ST(6)
        if n == 6: ST(7); ST(7, 5)
        if dsl2 and ks == 0: a(f"s_sleep {dsl2}\ns_nop 0")
        up = [f"v_add_u32 {v}, {(S2 if c % 3 < 2 else -2*S2) & 0xffffffff}, {v}" for v in [vHa] + [vWb[t] for t in range(4)]] if ks == 2 and c < 8 else []
        if n == 15: up = [f"v_mov_b32 {ZS[i]}, {sTag}" for i in (3, 7, 11, 15)]
        if n == 16: up = [f"v_mov_b32 {ZS[i]}, {sTag}" for i in (19, 21)] + [f"v_lshlrev_b32 {vL8}, 3, {vL}"]
        if n == 0:
            for t in range(4):
                if t: a(f"v_xor_b32 {vT2}, {32*t}, {vXl}")
                for r in range(2): a(f"ds_read_b64 {XR[4*t+2*r:4*t+2*r+2]}, {vT2 if t else vXl} offset:{2048*r}")
            r0_ = rd2(0, 0)
            for l in r0_[:6]: a(l)
            a("s_waitcnt lgkmcnt(6)")
            for l in r0_[6:]: a(l)
            for t in range(4):
                for l in unp(BR[2*t:2*t+2]): a(l)
                for r in range(2):
                    for l in unp(XR[4*t+2*r:4*t+2*r+2], A2(r, t)) + padd(A2(r, t)): a(l)
        else:
            for l in weave(mm2((n-1) % 2, n == 1), (rd2(n % 2, ks), [1]*12 + [0]*4), (up, [0]*12 + [2, 1, 1, 1])): a(l)
        if n <= 5: ST(n + 1, 5)
        if n == rn: rtab()
        if n == fln:
            a(f"v_lshl_add_u32 {vT0}, {vL}, 2, {sFl}\nv_add_u32 {vT1}, 2, {vTag}"); sflag()
    a("s_waitcnt lgkmcnt(0)")
    cv = [f"v_cvt_pk_bf16_f32 {ZS[i + i//3]}, {SEND[2*i]}, {SEND[2*i+1]}" for i in (0, 1, 8, 9, 2, 3, 10, 11, 4, 5, 12, 13, 6, 7, 14, 15)]
    for l in mm2(0, rs=(2, 3)) + weave(mm2(0, rs=(0, 1)), (cv, [0, 0, 0, 0, 2, 2, 2, 2])): a(l)
    ST(1, 2)
    def zio(op, R, so):
        for i in range(4): a(f"buffer_{op}_dwordx4 {R[4*i:4*i+4]}, {vL16}, {r0}, {so} offen offset:{1024*i} sc1")
        a(f"s_add_u32 {sT0}, {so}, 4096\nbuffer_{op}_dwordx4 {R[16:20]}, {vL16}, {r0}, {sT0} offen sc1\nbuffer_{op}_dwordx2 {R[20:22]}, {vL8}, {r0}, {sT0} offen offset:1024 sc1")
    zio("store", ZS, sZo)
    ST(5, 2)
    a(f"s_mul_i32 {sT0}, {sNu}, {S2}\nv_add_u32 {vHa}, {sT0}, {vL16}\ns_mov_b32 {sC}, 0\ns_waitcnt vmcnt({zw})")
    ST(6, 2)
    zio("load", ZR, sZi)
    a("s_barrier")
    ST(2, 2)
    QB = Reg('v', bH[0].base, 64)
    qoff = lambda q, t: ((q & 1)*11 + (q >> 1)*5)*2048 + 1024*t
    for i in range(14): a(f"ds_read_b128 {QB[4*i:4*i+4]}, {vHa} offset:{qoff(i // 4, i % 4)}")
    for i in range(16):
        a(f"s_waitcnt lgkmcnt({min(13, 15 - i)})")
        for r in range(2): a(f"{MF16} {A2(r, i % 4)}, {QB[4*i:4*i+4]}, {Rf[8*((i//4)%2)+4*r:8*((i//4)%2)+4*r+4]}, {A2(r, i % 4)}")
        if i < 2: a(f"ds_read_b128 {QB[4*(i+14):4*(i+14)+4]}, {vHa} offset:{qoff(3, i + 2)}")
    zt = [ZR[i] for i in (3, 7, 11, 15, 19, 21)]
    a(f"s_branch S_zf\nS_z:\ns_sleep 4")
    zio("load", ZR, sZi)
    a(f"S_zf:\ns_add_u32 {sC}, {sC}, 1\ns_waitcnt vmcnt(0)\nv_xor_b32 {vT0}, {vTag}, {zt[0]}")
    for i in (1, 3): a(f"v_xor_b32 {vT1}, {vTag}, {zt[i]}\nv_xor_b32 {vT2}, {vTag}, {zt[i+1]}\nv_or3_b32 {vT0}, {vT0}, {vT1}, {vT2}")
    a(f"v_xor_b32 {vT1}, {vTag}, {zt[5]}\nv_or_b32 {vT0}, {vT0}, {vT1}\nv_cmp_ne_u32 vcc, 0, {vT0}\ns_cmp_ge_u32 {sC}, {SPIN_MAX}\ns_cbranch_scc1 S_z_ok\ns_cbranch_vccnz S_z\nS_z_ok:")
    ST(3, 2)
    a(f"s_lshl_b32 {sT0}, {sW}, 12\ns_add_u32 {sT0}, {sT0}, {XL_OFF}\nv_add_u32 {vT2}, {sT0}, {vL16}")
    for r in range(2):
        for t in range(4):
            i = 8*r + 2*t; D = A2(r, t)
            for l in unp([ZR[i + i//3], ZR[i + 1 + (i+1)//3]]) + padd(D): a(l)
            if t: a(f"v_xor_b32 {vT1}, {32*t}, {vXl}")
            a(f"v_cvt_pk_bf16_f32 {D[0]}, {D[0]}, {D[1]}\nv_cvt_pk_bf16_f32 {D[1]}, {D[2]}, {D[3]}\nds_write_b64 {vT1 if t else vXl}, {D[0:2]} offset:{2048*r}")
        for i in range(2*r, 2*r + 2): a(f"ds_read_b128 {ZS[4*i:4*i+4]}, {vT2} offset:{1024*i}")
    for i in range(4): a(f"s_waitcnt lgkmcnt({[7, 6, 1, 0][i]})\nbuffer_store_dwordx4 {ZS[4*i:4*i+4]}, {vOo}, {r2}, {sOo} offen {osc}\ns_add_u32 {sOo}, {sOo}, {8*64*1280}")
    ST(4, 2)
    done()
    a("S_comp2a:"); bload(); a("s_waitcnt vmcnt(0)\ns_branch S_comp2")
    for l in retry: a(l)
    import sp_fft
    sp_fft.emit(locals())
    return a.text()

def gen_all(stamp=False, head="", **kw):
    n = NAME + "_kernel"
    s = module([(n, gen(stamp, **kw), 256, None)], [(n, 256, 512, LDS)], extra_text="code_end:\n", head=head)
    return s.replace(f"; @launch kernel={n} ", "; @launch ")
if __name__ == "__main__":
    import sys
    open("split.s", "w").write(gen_all())
    if len(sys.argv) > 1:
        head = open("cdna_kernels/" + NAME + ".s.ref").read().split("; Override launch")[0]
        open("cdna_kernels/" + NAME + ".s", "w").write(gen_all(head=head))
```
